```python
import torch

def _softmax(x, axis=-1):
    return torch.softmax(x, dim=axis)
def _gelu(x):
    return torch.nn.functional.gelu(x, approximate="tanh")
def _silu(x):
    return torch.nn.functional.silu(x)
def _sigmoid(x):
    return torch.sigmoid(x)
def _layernorm(x, axis=-1, eps=1e-5):
    m = x.mean(dim=axis, keepdim=True)
    v = x.var(dim=axis, keepdim=True, unbiased=False)
    return (x - m) / torch.sqrt(v + eps)
def _scatter_add(tgt, idx, src, axis=0):
    return tgt.clone().index_add_(axis, idx, src)
def _segment_sum(src, seg, n):
    out = torch.zeros((n,) + src.shape[1:], dtype=src.dtype)
    return out.index_add_(0, seg, src)
def _pad(x, pw):
    flat = tuple(v for pair in reversed(pw) for v in pair)
    return torch.nn.functional.pad(x, flat)

kernel_name = 'parallel_sum__softmax_full_mha__dense_activation_relu__prompt'

def setup_inputs():

    _w = (lambda a: (lambda t: t.to(torch.bfloat16) if t.is_floating_point() else t)(torch.as_tensor(a)))
    def _A_setup():
        B, S, D = 1, 2048, 640
        return {
            "x": _w((lambda *s: torch.randn(*s, dtype=torch.bfloat16) * 0.05)(B, S, D)),
            "wqkv": _w((lambda *s: torch.randn(*s, dtype=torch.bfloat16) * 0.2)(D, 3 * D)),
            "wo": _w((lambda *s: torch.randn(*s, dtype=torch.bfloat16) * 0.1)(D, D)),
        }
    _A_in = _A_setup()

    def _B_setup():
        B, S, D, Dff = 1, 2048, 640, 1728
        return {
            "x": _w((lambda *s: torch.randn(*s, dtype=torch.bfloat16) * 0.05)(B, S, D)),
            "w1": _w((lambda *s: torch.randn(*s, dtype=torch.bfloat16) * 0.2)(D, Dff)),
            "w2": _w((lambda *s: torch.randn(*s, dtype=torch.bfloat16) * 0.2)(Dff, D)),
        }
    _B_in = _B_setup()

    return {
        "A_x": _A_in["x"],
        "A_wqkv": _A_in["wqkv"],
        "A_wo": _A_in["wo"],
        "B_x": _B_in["x"],
        "B_w1": _B_in["w1"],
        "B_w2": _B_in["w2"],
    }

def reference(A_x, A_wqkv, A_wo, B_x, B_w1, B_w2):
    def _A_ref(x, wqkv, wo):
        B, S, D = x.shape
        H = 32; Dh = D // H
        qkv = (lambda x, *d: x.permute(*d))((x @ wqkv).reshape(B, S, 3, H, Dh), 2, 0, 3, 1, 4)
        q, k, v = qkv[0], qkv[1], qkv[2]
        scale = Dh ** -0.5
        scores = torch.einsum("bhqd,bhkd->bhqk", q, k) * scale
        p = _softmax(scores, axis=-1)
        o = torch.einsum("bhqk,bhkd->bhqd", p, v)
        return (lambda x, *d: x.permute(*d))(o, 0, 2, 1, 3).reshape(B, S, D) @ wo

    def _B_ref(x, w1, w2):
        h = torch.einsum("bsd,df->bsf", x, w1)
        zero = torch.zeros_like(h)
        h = torch.maximum(h, zero)
        return torch.einsum("bsf,fd->bsd", h, w2)

    x = A_x
    xn = _layernorm(x, axis=-1)
    return x + _A_ref(xn, A_wqkv, A_wo) + _B_ref(xn, B_w1, B_w2)
```

```python
class Asm:
    def __init__(self):
        self.lines = []
        self.uid = 0
    def __call__(self, s):
        for l in s.split("\n"):
            l = l.strip()
            if l:
                self.lines.append("    " + l)
    def c(self, s):
        self.lines.append("    ; " + s)
    def label(self, l):
        self.lines.append(l + ":")
    def raw(self, l):
        self.lines.append(l)
    def newlabel(self, p="L"):
        self.uid += 1
        return f"{p}_{self.uid}"
    def text(self):
        return "\n".join(self.lines) + "\n"

def v(i, n=1):
    return f"v{i}" if n == 1 else f"v[{i}:{i+n-1}]"
def s(i, n=1):
    return f"s{i}" if n == 1 else f"s[{i}:{i+n-1}]"
def a(i, n=1):
    return f"a{i}" if n == 1 else f"a[{i}:{i+n-1}]"

class Alloc:
    def __init__(self, start=0, limit=256):
        self.p = start; self.limit = limit; self.names = {}
    def __call__(self, n=1, align=1, name=None):
        if n >= 2 and align < 2: align = 2
        self.p = (self.p + align - 1) // align * align
        r = self.p; self.p += n
        assert self.p <= self.limit, f"out of regs {self.p} > {self.limit}"
        return r

def kernel_wrap(name, body, nv, ns=102, accum=None):
    if accum is None:
        accum = (nv + 3) // 4 * 4
    return f""".text
.globl {name}
.p2align 8
.type {name},@function
{name}:
{body}.section .rodata,"a"
.p2align 6
.amdhsa_kernel {name}
  .amdhsa_next_free_vgpr {nv}
  .amdhsa_next_free_sgpr {ns}
  .amdhsa_accum_offset {accum}
  .amdhsa_group_segment_fixed_size 0
  .amdhsa_kernarg_size 72
  .amdhsa_user_sgpr_count 2
  .amdhsa_user_sgpr_kernarg_segment_ptr 1
  .amdhsa_system_sgpr_workgroup_id_x 1
.end_amdhsa_kernel
"""

def srd(A, d, base_lo, base_hi, off, size):
    if off:
        A(f"s_add_u32 s{d}, s{base_lo}, {off}")
        A(f"s_addc_u32 s{d+1}, s{base_hi}, 0")
    else:
        A(f"s_mov_b32 s{d}, s{base_lo}")
        A(f"s_mov_b32 s{d+1}, s{base_hi}")
    A(f"s_mov_b32 s{d+2}, {size}")
    A(f"s_mov_b32 s{d+3}, 0x00020000")

WS_QK = 0;          SZ_QK = 64 * 160 * 512
WS_VT = 0x500000;   SZ_VT = 64 * 40960
WS_H = 0x780000;    SZ_H = 128 * 54 * 1024
WS_OF = 0xE40000;   SZ_OF = 128 * 20 * 1024
WS_WF = 0x10C0000;  SZ_WF = 74 * 40 * 1024
WS_Y = 0x13B0000;   SZ_Y = 2048 * 640 * 4
WS_TS = 0x8000000

class Stamper:
    def __init__(self, A, on, vTS, vTR):
        self.A, self.on, self.a, self.b = A, on, vTS, vTR
    def __call__(self, idx):
        if not self.on: return
        A = self.A
        A("s_memtime s[92:93]"); A("s_memrealtime s[94:95]")
        A("s_waitcnt lgkmcnt(0)")
        A(f"v_writelane_b32 v{self.a}, s92, {idx}")
        A(f"v_writelane_b32 v{self.b}, s94, {idx}")
    def dump(self, ws_lo, sW, wpb, slot=0):
        if not self.on: return
        A = self.A
        srd(A, 88, ws_lo, ws_lo + 1, WS_TS + slot * (1 << 20), 1 << 20)
        A(f"s_mul_i32 s92, s2, {wpb}")
        A(f"s_add_u32 s92, s92, s{sW}")
        A("s_lshl_b32 s92, s92, 7")
        A("v_mbcnt_lo_u32_b32 v0, -1, 0")
        A("v_lshlrev_b32 v0, 2, v0")
        A("s_mov_b64 exec, 0xffff")
        A(f"buffer_store_dword v{self.a}, v0, s[88:91], s92 offen")
        A(f"buffer_store_dword v{self.b}, v0, s[88:91], s92 offen offset:64")
```

```python
from asmlib import *
import struct
def f2u(x): return struct.unpack("<I", struct.pack("<f", x))[0]

def gen_k1(name="proj_kernel", ts=False, var=""):
    A = Asm()
    LA = 0; LB = 49152; LST = 147456; LCS = 16384
    lds = LST + 1024
    R = Alloc(2)
    vLane = 1
    vTS = R(); vTR = R()
    ST = Stamper(A, ts, vTS, vTR)
    vT = [R() for _ in range(4)]
    vXa = [R(), R()]
    vWa = [R() for _ in range(8)]
    ONES = R(4, 4)
    XF = [[R(4, 4) for _ in range(4)] for _ in range(2)]
    WF = [R(4, 4) for _ in range(8)]
    CS = [R(4, 4) for _ in range(4)]
    ACC = [[R(4, 4) for _ in range(8)] for _ in range(4)]
    nv = R.p
    sW, sRow, sCol, sHb, sT0, sT1, sT2, sT3, sCnt = 32, 33, 34, 35, 36, 37, 38, 39, 40
    sWm, sWn, sP, sStr, sA, sB, sMA, sMB, sQs = 41, 42, 43, 44, 45, 46, 47, 48, 49
    sD0, sD1, sD2, sU, sO = 50, 51, 52, 53, 54

    A("s_cmp_ge_u32 s2, 256")
    A("s_cbranch_scc1 k1_exit")
    A("s_load_dwordx8 s[4:11], s[0:1], 0")
    A("s_load_dwordx4 s[12:15], s[0:1], 32")
    A("s_load_dwordx2 s[16:17], s[0:1], 64")
    A(f"v_lshrrev_b32 v{vT[0]}, 6, v0")
    A(f"v_and_b32 v{vLane}, 63, v0")
    A(f"s_and_b32 s{sT0}, s2, 7")
    A(f"v_readfirstlane_b32 s{sW}, v{vT[0]}")
    A(f"s_lshr_b32 s{sT1}, s2, 3")
    A(f"s_and_b32 s{sRow}, s{sT0}, 1")
    A(f"s_lshl_b32 s{sRow}, s{sRow}, 3")
    A(f"s_and_b32 s{sT2}, s{sT1}, 7")
    A(f"s_add_u32 s{sRow}, s{sRow}, s{sT2}")
    A(f"s_lshr_b32 s{sCol}, s{sT0}, 1")
    A(f"s_lshl_b32 s{sCol}, s{sCol}, 2")
    A(f"s_lshr_b32 s{sT2}, s{sT1}, 3")
    A(f"s_add_u32 s{sCol}, s{sCol}, s{sT2}")
    ST(0)
    A(f"s_cmp_eq_u32 s{sCol}, 15")
    A("s_cbranch_scc1 k1_relay")
    A(f"s_cmp_lt_u32 s{sW}, 4")
    A("s_cbranch_scc1 k1_cons")
    A(f"s_sub_u32 s{sP}, s{sW}, 4")
    A(f"s_and_b32 s{sT0}, s{sP}, 1")
    A(f"s_lshl_b32 s{sHb}, s{sCol}, 1")
    A(f"s_add_u32 s{sHb}, s{sHb}, s{sT0}")
    A(f"s_cmp_lt_u32 s{sHb}, 15")
    A(f"s_movk_i32 s{sStr}, 3456")
    A(f"s_cselect_b32 s{sStr}, 3840, s{sStr}")
    A(f"s_cselect_b32 s{sT1}, 0, 15")
    A(f"s_sub_u32 s{sT1}, s{sHb}, s{sT1}")
    A(f"s_lshl_b32 s{sB}, s{sT1}, 8")
    A(f"s_lshr_b32 s{sT1}, s{sP}, 1")
    A(f"s_lshl_b32 s{sT2}, s{sT1}, 5")
    A(f"s_mul_i32 s{sT2}, s{sT2}, s{sStr}")
    A(f"s_add_u32 s{sB}, s{sB}, s{sT2}")
    A(f"s_mul_i32 s{sMB}, s{sT0}, 49152")
    A(f"s_lshl_b32 s{sT1}, s{sT1}, 13")
    A(f"s_add_u32 s{sMB}, s{sMB}, s{sT1}")
    A(f"s_add_u32 s{sMB}, s{sMB}, {LB}")
    A(f"s_lshl_b32 s{sMA}, s{sP}, 12")
    A(f"s_lshl_b32 s{sA}, s{sRow}, 2")
    A(f"s_add_u32 s{sA}, s{sA}, s{sP}")
    A(f"s_mul_i32 s{sA}, s{sA}, {32*1280}")
    A(f"s_lshl_b32 s{sD0}, s{sStr}, 2")
    A(f"s_lshl_b32 s{sD1}, s{sStr}, 5")
    vA0, vA1, vB0, vB1, vL16 = vWa[0], vWa[1], vWa[2], vWa[3], vWa[4]
    A(f"v_lshrrev_b32 v{vT[0]}, 4, v{vLane}")
    A(f"v_lshrrev_b32 v{vT[1]}, 3, v{vLane}")
    A(f"v_and_b32 v{vT[2]}, 7, v{vLane}")
    A(f"v_xor_b32 v{vT[2]}, v{vT[2]}, v{vT[0]}")
    A(f"v_lshlrev_b32 v{vT[2]}, 4, v{vT[2]}")
    A(f"v_xor_b32 v{vT[3]}, 64, v{vT[2]}")
    A(f"v_mul_u32_u24 v{vT[1]}, 1280, v{vT[1]}")
    A(f"v_add_u32 v{vA0}, v{vT[1]}, v{vT[2]}")
    A(f"v_add_u32 v{vA1}, v{vT[1]}, v{vT[3]}")
    A(f"v_and_b32 v{vT[2]}, 15, v{vLane}")
    A(f"v_lshlrev_b32 v{vT[3]}, 1, v{vT[0]}")
    A(f"v_xor_b32 v{vT[2]}, v{vT[2]}, v{vT[3]}")
    A(f"v_lshlrev_b32 v{vT[2]}, 4, v{vT[2]}")
    A(f"v_xor_b32 v{vT[3]}, 128, v{vT[2]}")
    A(f"v_mul_u32_u24 v{vT[0]}, s{sStr}, v{vT[0]}")
    A(f"v_add_u32 v{vB0}, v{vT[0]}, v{vT[2]}")
    A(f"v_add_u32 v{vB1}, v{vT[0]}, v{vT[3]}")
    A(f"v_lshlrev_b32 v{vL16}, 4, v{vLane}")
    A(f"v_add_u32 v{vL16}, s{sMA}, v{vL16}")
    PX = ACC[0][0]
    PU = ACC[1][0]
    SX = ACC[2][0]
    for i in range(8):
        A(f"v_mov_b32 v{SX+i}, 0")
    A("s_waitcnt lgkmcnt(0)")
    srd(A, 20, 4, 5, 0, 2048 * 1280)
    A(f"s_cmp_lt_u32 s{sHb}, 15")
    A("s_cselect_b32 s24, s6, s12")
    A("s_cselect_b32 s25, s7, s13")
    A(f"s_mul_i32 s26, s{sStr}, 640")
    A(f"s_cmp_eq_u32 s{sHb}, 29")
    A("s_cselect_b32 s26, 0, s26")
    A("s_mov_b32 s27, 0x00020000")
    def issue_l(buf):
        G = []
        for i in range(4):
            G.append([f"s_add_u32 m0, s{sMA}, {buf*16384 + i*1024}", f"s_add_u32 s{sT0}, s{sA}, {i*10240}",
                      f"buffer_load_dwordx4 v{vA1 if i & 1 else vA0}, s[20:23], s{sT0} offen lds"])
        G[-1].append(f"s_add_u32 s{sA}, s{sA}, 128")
        for i in range(8):
            G.append([f"s_add_u32 m0, s{sMB}, {buf*16384 + i*1024}", "s_nop 0",
                      f"buffer_load_dwordx4 v{vB1 if i & 2 else vB0}, s[24:27], s{sB} offen lds", f"s_add_u32 s{sB}, s{sB}, s{sD0}"])
        G[-1].append(f"s_add_u32 s{sB}, s{sB}, s{sD1}")
        return G
    def stats_l(buf):
        L = []
        for ip in range(2):
            L.append(f"s_waitcnt lgkmcnt({2-2*ip})")
            S2 = []
            for e in range(2):
                i = 2 * ip + e; U = PU + 8 * e
                T = []
                for q in range(4):
                    T.append(f"v_lshlrev_b32 v{U+2*q}, 16, v{PX+4*i+q}")
                    T.append(f"v_and_b32 v{U+2*q+1}, 0xffff0000, v{PX+4*i+q}")
                for q in range(8):
                    T.append(f"v_fmac_f32 v{SX+4+i}, v{U+q}, v{U+q}")
                    if q & 1:
                        T.append(f"v_add_f32 v{U+q}, v{U+q}, v{U+q-1}")
                T.append(f"v_add_f32 v{U+1}, v{U+1}, v{U+3}")
                T.append(f"v_add_f32 v{U+5}, v{U+5}, v{U+7}")
                T.append(f"v_add_f32 v{SX+i}, v{SX+i}, v{U+1}")
                T.append(f"v_add_f32 v{SX+i}, v{SX+i}, v{U+5}")
                S2.append(T)
            for a_, b_ in zip(*S2):
                L.append(a_); L.append(b_)
        return L
    def work(ibuf, sbuf):
        G = issue_l(ibuf) if ibuf is not None else []
        L = stats_l(sbuf) if sbuf is not None and "nostats" not in var else []
        if L:
            for i in range(4):
                A(f"ds_read_b128 {v(PX+4*i,4)}, v{vL16} offset:{sbuf*16384 + i*1024}")
        per = (len(L) + 10) // 11 if G else len(L)
        for k, g in enumerate(G):
            for t in g: A(t)
            if k >= 1:
                for t in L[:per]: A(t)
                L = L[per:]
        for t in L: A(t)
    work(0, None)
    work(1, None)
    ST(1)
    A("s_waitcnt vmcnt(12)")
    A("s_barrier")
    ST(2)
    work(2, 0)
    for st in range(10):
        if st <= 7:
            A("s_waitcnt vmcnt(12)")
        elif st == 8:
            A("s_waitcnt vmcnt(0)")
        if st in (3, 4): ST(5 + 5 * (st - 3))
        A("s_barrier")
        if st in (3, 4): ST(6 + 5 * (st - 3))
        work(st % 3 if st + 3 < 10 else None, (st + 1) % 3 if st + 1 < 10 else None)
        if st in (3, 4): ST(8 + 5 * (st - 3))
        if st == 8:
            for dpp in ("quad_perm:[1,0,3,2]", "quad_perm:[2,3,0,1]", "row_half_mirror"):
                for i in range(8):
                    A(f"v_add_f32_dpp v{SX+i}, v{SX+i}, v{SX+i} {dpp} row_mask:0xf bank_mask:0xf")
            for i in range(4):
                A(f"v_mul_f32 v{SX+i}, 0x{f2u(1.0/640):08x}, v{SX+i}")
                A(f"v_mul_f32 v{SX+4+i}, 0x{f2u(1.0/640):08x}, v{SX+4+i}")
            for i in range(4):
                A(f"v_fma_f32 v{SX+4+i}, -v{SX+i}, v{SX+i}, v{SX+4+i}")
            for i in range(4):
                A(f"v_max_f32 v{SX+4+i}, 0, v{SX+4+i}")
            for i in range(4):
                A(f"v_add_f32 v{SX+4+i}, 0x{f2u(1e-5):08x}, v{SX+4+i}")
            for i in range(4):
                A(f"v_rsq_f32 v{SX+4+i}, v{SX+4+i}")
            A(f"v_lshrrev_b32 v{vT[0]}, 3, v{vLane}")
            A(f"v_lshlrev_b32 v{vT[0]}, 2, v{vT[0]}")
            A(f"s_lshl_b32 s{sT0}, s{sP}, 7")
            A(f"s_add_u32 s{sT0}, s{sT0}, {LST}")
            A(f"v_add_u32 v{vT[0]}, s{sT0}, v{vT[0]}")
            for i in range(4):
                A(f"v_mul_f32 v{SX+i}, -v{SX+i}, v{SX+4+i}" if False else f"v_mul_f32_e64 v{SX+i}, -v{SX+i}, v{SX+4+i}")
            for i in range(4):
                A(f"ds_write_b32 v{vT[0]}, v{SX+4+i} offset:{i*32}")
                A(f"ds_write_b32 v{vT[0]}, v{SX+i} offset:{512+i*32}")
            A("s_waitcnt lgkmcnt(0)")
    ST(3)
    ST.dump(16, sW, 8)
    A("s_endpgm")
    A.label("k1_cons")
    A("s_setprio 2")
    A(f"s_and_b32 s{sWm}, s{sW}, 1")
    A(f"s_lshr_b32 s{sWn}, s{sW}, 1")
    A(f"s_lshl_b32 s{sHb}, s{sCol}, 1")
    A(f"s_add_u32 s{sHb}, s{sHb}, s{sWn}")
    A(f"s_cmp_eq_u32 s{sHb}, 29")
    A("s_cbranch_scc0 k1_cgo")
    for i in range(11):
        A("s_barrier")
    A("s_endpgm")
    A.label("k1_cgo")
    A(f"v_lshrrev_b32 v{vT[0]}, 4, v{vLane}")
    A(f"v_and_b32 v{vT[1]}, 15, v{vLane}")
    A(f"v_lshrrev_b32 v{vT[2]}, 1, v{vT[1]}")
    A(f"v_xor_b32 v{vT[2]}, v{vT[2]}, v{vT[0]}")
    A(f"v_lshlrev_b32 v{vT[2]}, 4, v{vT[2]}")
    A(f"v_lshl_add_u32 v{vT[2]}, v{vT[1]}, 7, v{vT[2]}")
    A(f"s_lshl_b32 s{sT0}, s{sWm}, 13")
    A(f"v_add_u32 v{vXa[0]}, s{sT0}, v{vT[2]}")
    A(f"v_xor_b32 v{vXa[1]}, 64, v{vXa[0]}")
    A(f"v_bfe_u32 v{vT[1]}, v{vLane}, 2, 2")
    A(f"v_lshl_add_u32 v{vT[2]}, v{vT[0]}, 3, v{vT[1]}")
    A(f"v_lshlrev_b32 v{vT[2]}, 8, v{vT[2]}")
    A(f"v_and_b32 v{vT[3]}, 1, v{vT[0]}")
    A(f"v_lshl_add_u32 v{vT[1]}, v{vT[3]}, 2, v{vT[1]}")
    A(f"v_lshl_add_u32 v{vT[2]}, v{vT[1]}, 5, v{vT[2]}")
    A(f"v_and_b32 v{vT[1]}, 3, v{vLane}")
    A(f"v_lshl_add_u32 v{vT[2]}, v{vT[1]}, 3, v{vT[2]}")
    A(f"s_mul_i32 s{sT0}, s{sWn}, 49152")
    A(f"s_add_u32 s{sT0}, s{sT0}, {LB}")
    A(f"v_add_u32 v{vWa[0]}, s{sT0}, v{vT[2]}")
    A(f"s_lshl_b32 s{sT0}, s{sWm}, 7")
    A(f"v_xor_b32 v{vWa[0]}, s{sT0}, v{vWa[0]}")
    for j in range(1, 8):
        A(f"v_xor_b32 v{vWa[j]}, {j<<5}, v{vWa[0]}")
    for i in range(4):
        A(f"v_mov_b32 v{ONES+i}, 0x3f803f80")
    for i in range(16):
        A(f"v_mov_b32 v{CS[0]+i}, 0")
    for i in range(128):
        A(f"v_mov_b32 v{ACC[0][0]+i}, 0")
    A(f"s_mov_b32 s{sCnt}, 0")
    def rdX(par, buf, kk, tb):
        A(f"ds_read_b128 {v(XF[par][tb],4)}, v{vXa[kk]} offset:{buf*16384 + tb*2048}")
    def rdW(buf, kk, j):
        A(f"ds_read_b64_tr_b16 {v(WF[j],2)}, v{vWa[j]} offset:{buf*16384 + kk*8192}")
        A(f"ds_read_b64_tr_b16 {v(WF[j]+2,2)}, v{vWa[j]} offset:{buf*16384 + kk*8192 + 1024}")
    A("s_waitcnt lgkmcnt(0)")
    ST(1)
    A("s_barrier")
    ST(2)
    PRO = len(A.lines)
    A(f"s_cmp_ge_u32 s{sHb}, 10")
    A(f"s_cselect_b32 s{sT0}, 1, 0")
    A(f"s_cmp_lt_u32 s{sHb}, 15")
    A(f"s_cselect_b32 s{sT0}, s{sT0}, 0")
    A(f"s_cmp_eq_u32 s{sT0}, 1")
    A("s_cbranch_scc1 k1_loopV")
    def mainloop(isV):
        sfx = "V" if isV else "T"
        A.raw(".p2align 6")
        A.label(f"k1_loop{sfx}")
        def mm(d, w, x):
            if isV: A(f"v_mfma_f32_16x16x32_bf16 {v(d,4)}, {v(x,4)}, {v(w,4)}, {v(d,4)}")
            else:   A(f"v_mfma_f32_16x16x32_bf16 {v(d,4)}, {v(w,4)}, {v(x,4)}, {v(d,4)}")
        hist = []
        def step(buf, kk, emit):
            nbuf, nkk = (buf, 1) if kk == 0 else ((buf + 1) % 3, 0)
            seq = []
            def doW(j):
                hist.extend([("W", j)] * 2); seq.append(("W", j))
                if emit: rdW(nbuf, nkk, j)
            def doX(tb):
                hist.append(("X", tb)); seq.append(("X", tb))
                if emit: rdX(kk ^ 1, nbuf, nkk, tb)
            start = len(hist)
            def need(tags):
                idx = max(i for i in range(start) if hist[i] in tags) if start else 0
                return min(len(hist) - 1 - idx, 15)
            wq = []; xq = [("X", t) for t in range(4)]
            known = -1
            gap = 0; lastgap = 0; tog = 0
            def slot():
                nonlocal gap, lastgap, tog
                gap += 1
                if kk == 1 and not passed: return
                if gap - lastgap < 2: return
                av = [t for t in wq if t[2] < gap]
                if xq and (tog == 0 or not av):
                    doX(xq.pop(0)[1]); lastgap = gap; tog = 1
                elif av:
                    wq.remove(av[0]); doW(av[0][1]); lastgap = gap; tog = 0
            passed = False
            for j in range(8):
                tags = [("W", j)] + ([("X", t) for t in range(4)] if j == 0 else [])
                idx = max(i for i in range(start) if hist[i] in tags) if start else 0
                if idx > known and not passed:
                    n = min(len(hist) - 1 - idx, 15)
                    known = len(hist) - 1 - n
                    if emit: A(f"s_waitcnt lgkmcnt({n})")
                for tb in range(4):
                    if emit: mm(ACC[tb][j], WF[j], XF[kk][tb])
                    slot()
                if j < 4:
                    if emit: mm(CS[j], WF[j], ONES)
                    slot()
                wq.append(("W", j, gap))
                if kk == 1 and j == 1:
                    if emit:
                        A("s_waitcnt lgkmcnt(0)")
                        A("s_barrier")
                    passed = True
                    doX(xq.pop(0)[1]); lastgap = gap; tog = 1
            for t in wq: doW(t[1])
            assert not xq
            return seq
        seq = step(2, 1, False)
        for buf in range(3):
            for kk in range(2):
                step(buf, kk, True)
                if buf == 0 and kk == 1:
                    A(f"s_cmp_eq_u32 s{sCnt}, 3")
                    A(f"s_cbranch_scc1 k1_done{sfx}")
        if not isV:
            keep = A.lines; A.lines = []
            for t in seq:
                if t[0] == "W": rdW(0, 0, t[1])
                else: rdX(0, 0, 0, t[1])
            A.lines = keep[:PRO] + A.lines + keep[PRO:]
        A(f"s_add_u32 s{sCnt}, s{sCnt}, 1")
        A(f"s_branch k1_loop{sfx}")
        A.label(f"k1_done{sfx}")
    def exchange():
        ST(3)
        A(f"v_lshlrev_b32 v{vT[0]}, 4, v{vLane}")
        A(f"s_lshl_b32 s{sT0}, s{sW}, 12")
        A(f"s_add_u32 s{sT0}, s{sT0}, {LCS}")
        A(f"v_add_u32 v{vT[1]}, s{sT0}, v{vT[0]}")
        A(f"v_xor_b32 v{vT[2]}, 0x1000, v{vT[1]}")
        A("s_waitcnt lgkmcnt(0)")
        for j in range(4):
            A(f"ds_write_b128 v{vT[1]}, {v(CS[j],4)} offset:{j*1024}")
        A("s_waitcnt lgkmcnt(0)")
        A("s_barrier")
        for j in range(4):
            A(f"ds_read_b128 {v(WF[j],4)}, v{vT[2]} offset:{j*1024}")
    CSall = CS + WF[:4]
    OUT = [XF[1][i] for i in range(4)]
    TMP = WF[4]
    VR = WF[6]; VM = WF[7]
    mainloop(False)
    exchange()
    RM = XF[0][0]
    A(f"v_and_b32 v{vT[1]}, 15, v{vLane}")
    A(f"s_lshl_b32 s{sT0}, s{sWm}, 8")
    A(f"s_add_u32 s{sT0}, s{sT0}, {LST}")
    A(f"v_lshl_add_u32 v{vT[1]}, v{vT[1]}, 2, s{sT0}")
    for tb in range(4):
        A(f"ds_read2_b32 {v(RM+2*tb,2)}, v{vT[1]} offset0:{16*tb} offset1:{128+16*tb}")
    A(f"s_cmp_lt_u32 s{sHb}, 5")
    A(f"s_cselect_b32 s{sQs}, 0x{f2u(20**-0.5*1.4426950408889634):08x}, 1.0")
    A(f"s_cmp_ge_u32 s{sHb}, 15")
    A("s_cbranch_scc1 k1_epiH")
    def norm2(tb, j, o, isV):
        for e in range(2):
            c = CSall[j + e]
            for hf in range(2):
                t = TMP + 4 * e + 2 * hf
                if isV:
                    A(f"v_pk_mul_f32 {v(t,2)}, {v(c,2)}, {v(VM+2*hf,2)}")
                else:
                    A(f"v_pk_mul_f32 {v(t,2)}, {v(c+2*hf,2)}, {v(RM+2*tb,2)} op_sel:[0,1] op_sel_hi:[1,1]")
        for e in range(2):
            a = ACC[tb][j + e]
            for hf in range(2):
                t = TMP + 4 * e + 2 * hf
                if isV:
                    A(f"v_pk_fma_f32 {v(a+2*hf,2)}, {v(a+2*hf,2)}, {v(VR+2*hf,2)}, {v(t,2)}")
                else:
                    A(f"v_pk_fma_f32 {v(a+2*hf,2)}, {v(a+2*hf,2)}, {v(RM+2*tb,2)}, {v(t,2)} op_sel:[0,0,0] op_sel_hi:[1,0,1]")
        for e in range(2):
            a = ACC[tb][j + e]
            for hf in range(2):
                A(f"v_cvt_pk_bf16_f32 v{o+2*e+hf}, v{a+2*hf}, v{a+2*hf+1}")
    srd(A, 28, 16, 17, WS_QK, SZ_QK)
    A(f"v_lshrrev_b32 v{vT[0]}, 4, v{vLane}")
    A(f"v_and_b32 v{vT[1]}, 1, v{vT[0]}")
    A(f"v_lshrrev_b32 v{vT[0]}, 1, v{vT[0]}")
    A(f"v_lshl_add_u32 v{vT[0]}, v{vT[1]}, 1, v{vT[0]}")
    A(f"v_and_b32 v{vT[1]}, 15, v{vLane}")
    A(f"v_lshlrev_b32 v{vT[1]}, 4, v{vT[1]}")
    A(f"v_lshl_add_u32 v{vT[0]}, v{vT[0]}, 9, v{vT[1]}")
    A(f"s_lshl_b32 s{sT0}, s{sRow}, 1")
    A(f"s_add_u32 s{sT0}, s{sT0}, s{sWm}")
    A(f"s_mul_i32 s{sO}, s{sT0}, {2*81920}")
    A(f"s_lshl_b32 s{sT0}, s{sHb}, 13")
    A(f"s_add_u32 s{sO}, s{sO}, s{sT0}")
    A(f"s_lshl_b32 s{sD0}, s{sWm}, 12")
    A("s_waitcnt lgkmcnt(0)")
    for i in range(8):
        A(f"v_mul_f32 v{RM+i}, s{sQs}, v{RM+i}")
    n = 0
    for tb in range(4):
        for jp in range(4):
            j = 2 * jp; o = OUT[n & 3]; n += 1
            norm2(tb, j, o, False)
            A(f"s_xor_b32 s{sT0}, s{sD0}, {j*1024}")
            A(f"s_add_u32 s{sT0}, s{sT0}, s{sO}")
            A(f"s_add_u32 s{sT0}, s{sT0}, {(tb>>1)*81920 + (tb&1)*256}")
            A(f"v_permlane16_swap_b32 v{o}, v{o+2}")
            A(f"v_permlane16_swap_b32 v{o+1}, v{o+3}")
            A(f"buffer_store_dwordx4 {v(o,4)}, v{vT[0]}, s[28:31], s{sT0} offen sc1")
    ST(4)
    ST.dump(16, sW, 8)
    A("s_endpgm")
    A.label("k1_epiH")
    srd(A, 28, 16, 17, WS_H, SZ_H)
    A(f"v_lshlrev_b32 v{vT[0]}, 4, v{vLane}")
    A(f"s_lshl_b32 s{sT0}, s{sRow}, 1")
    A(f"s_add_u32 s{sT0}, s{sT0}, s{sWm}")
    A(f"s_mul_i32 s{sO}, s{sT0}, {4*54*1024}")
    A(f"s_sub_u32 s{sT0}, s{sHb}, 15")
    A(f"s_lshl_b32 s{sT0}, s{sT0}, 12")
    A(f"s_add_u32 s{sO}, s{sO}, s{sT0}")
    A(f"s_lshl_b32 s{sD0}, s{sWm}, 11")
    A(f"s_cmp_eq_u32 s{sHb}, 28")
    A(f"s_cselect_b32 s{sD1}, 0x800, 0")
    A("s_waitcnt lgkmcnt(0)")
    n = 0
    for tb in range(4):
        for jp in range(4):
            j = 2 * jp; o = OUT[n & 3]; n += 1
            norm2(tb, j, o, False)
            A(f"s_xor_b32 s{sT0}, s{sD0}, {jp*1024}")
            A(f"s_and_b32 s{sT1}, s{sT0}, s{sD1}")
            A(f"s_lshl_b32 s{sT1}, s{sT1}, 16")
            A(f"s_add_u32 s{sT0}, s{sT0}, s{sT1}")
            A(f"s_add_u32 s{sT0}, s{sT0}, s{sO}")
            A(f"s_add_u32 s{sT0}, s{sT0}, {tb*54*1024}")
            for q in range(4):
                A(f"v_pk_max_i16 v{o+q}, v{o+q}, 0")
            A(f"buffer_store_dwordx4 {v(o,4)}, v{vT[0]}, s[28:31], s{sT0} offen sc1")
    ST(4)
    ST.dump(16, sW, 8)
    A("s_endpgm")
    mainloop(True)
    exchange()
    srd(A, 28, 16, 17, WS_VT, SZ_VT)
    A(f"v_lshrrev_b32 v{vT[0]}, 4, v{vLane}")
    A(f"s_lshl_b32 s{sT0}, s{sWm}, 8")
    A(f"s_add_u32 s{sT0}, s{sT0}, {LST}")
    A(f"v_lshl_add_u32 v{vT[3]}, v{vT[0]}, 4, s{sT0}")
    A(f"v_and_b32 v{vT[1]}, 1, v{vT[0]}")
    A(f"v_mul_u32_u24 v{vT[1]}, 10240, v{vT[1]}")
    A(f"v_lshrrev_b32 v{vT[0]}, 1, v{vT[0]}")
    A(f"v_lshl_add_u32 v{vT[0]}, v{vT[0]}, 8, v{vT[1]}")
    A(f"v_and_b32 v{vT[1]}, 15, v{vLane}")
    A(f"v_lshl_add_u32 v{vT[0]}, v{vT[1]}, 4, v{vT[0]}")
    A(f"s_lshl_b32 s{sT0}, s{sRow}, 1")
    A(f"s_add_u32 s{sT0}, s{sT0}, s{sWm}")
    A(f"s_mul_i32 s{sO}, s{sT0}, {2*40960}")
    A(f"s_sub_u32 s{sT0}, s{sHb}, 10")
    A(f"s_lshl_b32 s{sT0}, s{sT0}, 11")
    A(f"s_add_u32 s{sO}, s{sO}, s{sT0}")
    A(f"s_lshl_b32 s{sD0}, s{sWm}, 10")
    n = 0
    for tb in range(4):
        A(f"ds_read_b128 {v(VR,4)}, v{vT[3]} offset:{tb*64}")
        A(f"ds_read_b128 {v(VM,4)}, v{vT[3]} offset:{512+tb*64}")
        A("s_waitcnt lgkmcnt(0)")
        for jp in range(4):
            j = 2 * jp; o = OUT[n & 3]; n += 1
            norm2(tb, j, o, True)
            A(f"s_xor_b32 s{sT0}, s{sD0}, {j*256}")
            A(f"s_add_u32 s{sT0}, s{sT0}, s{sO}")
            A(f"s_add_u32 s{sT0}, s{sT0}, {(tb>>1)*40960 + (tb&1)*20480}")
            A(f"v_permlane32_swap_b32 v{o}, v{o+2}")
            A(f"v_permlane32_swap_b32 v{o+1}, v{o+3}")
            A(f"buffer_store_dwordx4 {v(o,4)}, v{vT[0]}, s[28:31], s{sT0} offen sc1")
    ST(4)
    ST.dump(16, sW, 8)
    A("s_endpgm")
    A.label("k1_relay")
    vS0, vS1, vRd, vSt = vWa[0], vWa[1], vWa[2], vWa[3]
    A(f"v_lshrrev_b32 v{vT[0]}, 4, v{vLane}")
    A(f"v_and_b32 v{vT[2]}, 15, v{vLane}")
    A(f"v_lshlrev_b32 v{vT[3]}, 1, v{vT[0]}")
    A(f"v_xor_b32 v{vT[2]}, v{vT[2]}, v{vT[3]}")
    A(f"v_lshlrev_b32 v{vT[2]}, 4, v{vT[2]}")
    A(f"v_xor_b32 v{vT[3]}, 128, v{vT[2]}")
    A(f"v_mul_u32_u24 v{vT[1]}, 1280, v{vT[0]}")
    A(f"v_add_u32 v{vS0}, v{vT[1]}, v{vT[2]}")
    A(f"v_add_u32 v{vS1}, v{vT[1]}, v{vT[3]}")
    A(f"v_bfe_u32 v{vT[1]}, v{vLane}, 2, 2")
    A(f"v_lshl_add_u32 v{vT[1]}, v{vT[0]}, 2, v{vT[1]}")
    A(f"v_and_b32 v{vT[2]}, 7, v{vT[1]}")
    A(f"v_lshlrev_b32 v{vT[1]}, 8, v{vT[1]}")
    A(f"v_lshl_add_u32 v{vT[1]}, v{vT[2]}, 5, v{vT[1]}")
    A(f"v_and_b32 v{vT[2]}, 3, v{vLane}")
    A(f"v_lshl_add_u32 v{vT[1]}, v{vT[2]}, 3, v{vT[1]}")
    A(f"s_lshl_b32 s{sMA}, s{sW}, 14")
    A(f"v_add_u32 v{vRd}, s{sMA}, v{vT[1]}")
    RD = [ACC[0][0] + i for i in range(8)]
    for j in range(8):
        A(f"v_xor_b32 v{RD[j]}, {j<<5}, v{vRd}")
    A(f"v_lshlrev_b32 v{vSt}, 4, v{vLane}")
    A(f"s_lshl_b32 s{sU}, s{sRow}, 3")
    A(f"s_add_u32 s{sU}, s{sU}, s{sW}")
    A("s_waitcnt lgkmcnt(0)")
    srd(A, 28, 16, 17, WS_WF, SZ_WF)
    sOo = [55, 56, 57]
    def rl_issue(k):
        A(f"s_add_u32 s{sT0}, s{sU}, {128*k}")
        A(f"s_mul_i32 s{sT1}, s{sT0}, 205")
        A(f"s_lshr_b32 s{sT1}, s{sT1}, 10")
        A(f"s_mul_i32 s{sT2}, s{sT1}, 5")
        A(f"s_sub_u32 s{sT2}, s{sT0}, s{sT2}")
        A(f"s_lshl_b32 s{sOo[k]}, s{sT0}, 13")
        A(f"s_lshl_b32 s{sB}, s{sT2}, 8")
        A(f"s_lshl_b32 s{sT3}, s{sT1}, 5")
        A(f"s_mov_b32 s{sD0}, {4*1280}")
        A(f"s_mov_b32 s{sD1}, {8*1280}")
        A(f"s_mov_b32 s{sD2}, {16*1280}")
        A(f"s_sub_u32 s{sT2}, s{sT1}, 54")
        A(f"s_mul_i32 s{sT2}, s{sT2}, 40")
        A(f"s_cmp_ge_u32 s{sT1}, 54")
        A("s_cselect_b32 s24, s8, s14")
        A("s_cselect_b32 s25, s9, s15")
        A(f"s_mov_b32 s26, {1728*1280}")
        A(f"s_cselect_b32 s26, {640*1280}, s26")
        A("s_mov_b32 s27, 0x00020000")
        A(f"s_cselect_b32 s{sT3}, s{sT2}, s{sT3}")
        A(f"s_cselect_b32 s{sD1}, {20*1280}, s{sD1}")
        A(f"s_cselect_b32 s{sD2}, {8*1280}, s{sD2}")
        A(f"s_sub_u32 s{sT2}, s{sT1}, 70")
        A(f"s_mul_i32 s{sT2}, s{sT2}, 160")
        A(f"s_add_u32 s{sT2}, s{sT2}, 16")
        A(f"s_cmp_ge_u32 s{sT1}, 70")
        A(f"s_cselect_b32 s{sT3}, s{sT2}, s{sT3}")
        A(f"s_cselect_b32 s{sD0}, {20*1280}, s{sD0}")
        A(f"s_cselect_b32 s{sD1}, {40*1280}, s{sD1}")
        A(f"s_cselect_b32 s{sD2}, {80*1280}, s{sD2}")
        A(f"s_mul_i32 s{sT3}, s{sT3}, 1280")
        A(f"s_add_u32 s{sB}, s{sB}, s{sT3}")
        for i in range(8):
            A(f"s_mov_b32 s{sT0}, s{sB}")
            if i & 1: A(f"s_add_u32 s{sT0}, s{sT0}, s{sD0}")
            if i & 2: A(f"s_add_u32 s{sT0}, s{sT0}, s{sD1}")
            if i & 4: A(f"s_add_u32 s{sT0}, s{sT0}, s{sD2}")
            A(f"s_add_u32 m0, s{sMA}, {(k&1)*8192 + i*1024}")
            A("s_nop 0")
            A(f"buffer_load_dwordx4 v{vS1 if i & 1 else vS0}, s[24:27], s{sT0} offen lds")
    def rl_move(k):
        D = ACC[1][0] + (k & 1) * 32
        for j in range(8):
            A(f"ds_read_b64_tr_b16 {v(D+4*j,2)}, v{RD[j]} offset:{(k&1)*8192}")
            A(f"ds_read_b64_tr_b16 {v(D+4*j+2,2)}, v{RD[j]} offset:{(k&1)*8192 + 4096}")
        for j in range(8):
            A(f"s_waitcnt lgkmcnt({14-2*j})")
            A(f"buffer_store_dwordx4 {v(D+4*j,4)}, v{vSt}, s[28:31], s{sOo[k]} offen offset:{(j&3)*1024} sc1")
            if j == 3:
                A(f"s_add_u32 s{sOo[k]}, s{sOo[k]}, 4096")
    rl_issue(0)
    rl_issue(1)
    A("s_waitcnt vmcnt(8)")
    rl_move(0)
    rl_issue(2)
    A("s_waitcnt vmcnt(16)")
    rl_move(1)
    A("s_waitcnt vmcnt(8)")
    rl_move(2)
    ST(4)
    ST.dump(16, sW, 8)
    A.label("k1_exit")
    A("s_endpgm")
    txt = A.text()
    if "plain" in var: txt = txt.replace(" offen sc1", " offen")
    if "nt" in var: txt = txt.replace(" offen sc1", " offen nt")
    if "nost" in var.split(","): txt = "\n".join(l for l in txt.split("\n") if not ("buffer_store_dwordx4" in l and "s[28:31], s36" in l))
    return kernel_wrap(name, txt, nv), lds, nv

if __name__ == "__main__":
    t, lds, nv = gen_k1()
    print(lds, nv, len(t.split("\n")))
```

```python
from asmlib import *

def gen_k2(name="attn_kernel", OFF=80.0, force_fallback=False, ts=False, var=""):
    A = Asm()
    import struct
    def f2u(x): return struct.unpack("<I", struct.pack("<f", x))[0]
    R = Alloc(2)
    vLane = 1
    vOffL = R(); vOffV = R(); vOffV2 = R(); vT0 = R(); vT1 = R(); vT2 = R(); vT3 = R(); vLds = R()
    O = [R(16, 4) for _ in range(4)]
    Q0 = [R(4, 4) for _ in range(4)]
    Q1 = [R(2) for _ in range(4)]
    K0 = [R(4, 4) for _ in range(2)]
    K1 = [R(2) for _ in range(2)]
    V = [R(8, 4) for _ in range(2)]
    S = [R(16, 4) for _ in range(2)]
    E = R(8, 4); P = R(8, 4)
    MX = R(4, 4)
    vTS = R(); vTR = R()
    nv = R.p
    def stamp(idx):
        if not ts: return
        A("s_memtime s[62:63]"); A("s_memrealtime s[64:65]")
        A("s_waitcnt lgkmcnt(0)")
        A(f"v_writelane_b32 v{vTS}, s62, {idx}")
        A(f"v_writelane_b32 v{vTR}, s64, {idx}")
    sW, sHd, sQgrp, sQg, sKs = 20, 21, 22, 23, 24
    sK0, sK1, sV, sCnt = 25, 26, 27, 28
    sLo, sVm = 30, 32
    sPass = 34
    sK0b, sK1b, sVb = 35, 36, 37
    sT0, sT1, sT2 = 38, 39, 40
    sQ0, sQ1 = 41, 42
    LDS_FLAG = 98304
    LDS_MX = 98304 + 64

    A("s_cmp_ge_u32 s2, 256")
    A("s_cbranch_scc1 k2_exit")
    A("s_load_dwordx2 s[4:5], s[0:1], 64")
    stamp(0)
    A(f"v_and_b32 v{vLane}, 63, v0")
    A(f"v_lshrrev_b32 v{vT0}, 6, v0")
    A(f"v_lshlrev_b32 v{vOffL}, 4, v{vLane}")
    A(f"v_readfirstlane_b32 s{sW}, v{vT0}")
    A(f"s_and_b32 s{sT0}, s2, 7")
    A(f"s_lshl_b32 s{sHd}, s{sT0}, 2")
    A(f"s_bfe_u32 s{sT0}, s2, 0x20003")
    A(f"s_add_u32 s{sHd}, s{sHd}, s{sT0}")
    A(f"s_lshr_b32 s{sQgrp}, s2, 5")
    A(f"s_and_b32 s{sQg}, s{sW}, 1")
    A(f"s_lshr_b32 s{sKs}, s{sW}, 1")
    A(f"s_mov_b32 s{sLo}, -1")
    A(f"s_mov_b32 s{sLo+1}, 0")
    A(f"s_mov_b32 s{sVm}, 0xfffff")
    A(f"s_mov_b32 s{sVm+1}, 0xfffff")
    A(f"s_mov_b32 s{sPass}, 0")
    A(f"s_mul_i32 s{sT0}, s{sHd}, 5")
    A(f"s_add_u32 s{sT1}, s{sT0}, 1")
    A(f"s_lshr_b32 s{sT1}, s{sT1}, 1")
    A(f"s_lshl_b32 s{sQ0}, s{sT1}, 9")
    A(f"s_lshr_b32 s{sT1}, s{sT0}, 1")
    A(f"s_lshl_b32 s{sT1}, s{sT1}, 9")
    A(f"s_and_b32 s{sT2}, s{sHd}, 1")
    A(f"s_cmp_eq_u32 s{sT2}, 0")
    A(f"s_cselect_b32 s{sT2}, 1024, 8")
    A(f"s_add_u32 s{sQ1}, s{sT1}, s{sT2}")
    A(f"s_add_u32 s{sK0b}, s{sQ0}, {80*512}")
    A(f"s_add_u32 s{sK1b}, s{sQ1}, {80*512}")
    A(f"s_mul_i32 s{sVb}, s{sHd}, 320")
    A(f"v_lshrrev_b32 v{vT0}, 5, v{vLane}")
    A(f"v_mul_u32_u24 v{vT0}, 10240, v{vT0}")
    A(f"v_and_b32 v{vT1}, 31, v{vLane}")
    A(f"v_lshl_add_u32 v{vOffV}, v{vT1}, 4, v{vT0}")
    A(f"v_add_u32 v{vOffV2}, 20480, v{vOffV}")
    for b in range(2):
        A(f"v_mov_b32 v{K1[b]}, 0x3f803f80")
        A(f"v_mov_b32 v{K1[b]+1}, 0x3f80")
        for i in range(8):
            A(f"v_mov_b32 v{V[b]+i}, 0x3f803f80" if "vzero" not in var else f"v_mov_b32 v{V[b]+i}, 0")
    for j in range(4):
        A(f"v_mov_b32 v{Q1[j]}, 0")
        A(f"v_mov_b32 v{Q1[j]+1}, 0")
    A(f"v_mov_b32 v{vT0}, {LDS_FLAG}")
    A(f"v_mov_b32 v{vT1}, 0")
    A(f"ds_write_b32 v{vT0}, v{vT1}")
    A("s_waitcnt lgkmcnt(0)")
    stamp(11)
    srd(A, 8, 4, 5, WS_QK, SZ_QK)
    srd(A, 12, 4, 5, WS_VT, SZ_VT)
    srd(A, 16, 4, 5, WS_OF, SZ_OF)
    A(f"s_lshl_b32 s{sT0}, s{sQgrp}, 3")
    A(f"s_lshl_b32 s{sT1}, s{sQg}, 2")
    A(f"s_add_u32 s{sT0}, s{sT0}, s{sT1}")
    A(f"s_mul_i32 s{sT0}, s{sT0}, 81920")
    A(f"s_add_u32 s{sQ0}, s{sQ0}, s{sT0}")
    A(f"s_add_u32 s{sQ1}, s{sQ1}, s{sT0}")
    def loadK(b, s0, s1):
        A(f"buffer_load_dwordx4 {v(K0[b],4)}, v{vOffL}, s[8:11], s{s0} offen")
        A(f"s_mov_b64 exec, s[{sLo}:{sLo+1}]")
        A(f"buffer_load_dwordx2 {v(K1[b],2)}, v{vOffL}, s[8:11], s{s1} offen")
        A("s_mov_b64 exec, -1")
    def loadV(b, sv):
        A(f"s_mov_b64 exec, s[{sVm}:{sVm+1}]")
        A(f"buffer_load_dwordx4 {v(V[b],4)}, v{vOffV}, s[12:15], s{sv} offen")
        A(f"buffer_load_dwordx4 {v(V[b]+4,4)}, v{vOffV2}, s[12:15], s{sv} offen")
        A("s_mov_b64 exec, -1")
    loadK(1, sK0b, sK1b)
    for j in range(4):
        A(f"buffer_load_dwordx4 {v(Q0[j],4)}, v{vOffL}, s[8:11], s{sQ0} offen")
        A(f"s_mov_b64 exec, s[{sLo}:{sLo+1}]")
        A(f"buffer_load_dwordx2 {v(Q1[j],2)}, v{vOffL}, s[8:11], s{sQ1} offen")
        A("s_mov_b64 exec, -1")
        if j < 3:
            A(f"s_add_u32 s{sQ0}, s{sQ0}, 81920")
            A(f"s_add_u32 s{sQ1}, s{sQ1}, 81920")
    A(f"s_mul_i32 s{sT0}, s{sKs}, {16*81920}")
    A(f"s_add_u32 s{sK0b}, s{sK0b}, s{sT0}")
    A(f"s_add_u32 s{sK1b}, s{sK1b}, s{sT0}")
    A(f"s_mul_i32 s{sT0}, s{sKs}, {16*40960}")
    A(f"s_add_u32 s{sVb}, s{sVb}, s{sT0}")
    A(f"s_mov_b32 s{sK0}, s{sK0b}")
    A(f"s_mov_b32 s{sK1}, s{sK1b}")
    A(f"s_mov_b32 s{sV}, s{sVb}")
    loadK(0, sK0, sK1)
    loadV(0, sV)
    stamp(12)
    A("s_waitcnt vmcnt(4)")
    stamp(13)
    tmpS = [S[0], S[1], O[0], O[1]]
    for j in range(4):
        A(f"v_mfma_f32_32x32x16_bf16 {v(tmpS[j],16)}, {v(K0[1],4)}, {v(Q0[j],4)}, 0")
    for j in range(4):
        A(f"v_mfma_f32_32x32x8_bf16 {v(tmpS[j],16)}, {v(K1[1],2)}, {v(Q1[j],2)}, {v(tmpS[j],16)}")
    A("s_nop 7")
    A("s_nop 3")
    def maxred(dst, src, init):
        if init:
            A(f"v_max3_f32 v{dst}, v{src}, v{src+1}, v{src+2}")
            A(f"v_max_f32 v{dst}, v{dst}, v{src+3}")
            st = 4
        else:
            st = 0
        for i in range(st, 16, 2):
            A(f"v_max3_f32 v{dst}, v{dst}, v{src+i}, v{src+i+1}")
    def crosshalf_max(r):
        A(f"v_mov_b32 v{vT0}, v{r}")
        A("s_nop 1")
        A(f"v_permlane32_swap_b32 v{r}, v{vT0}")
        A("s_nop 1")
        A(f"v_max_f32 v{r}, v{r}, v{vT0}")
    def set_m(j, r):
        A(f"v_sub_f32 v{vT0}, 0, v{r}")
        A(f"v_and_b32 v{vT1}, 0xffff0000, v{vT0}")
        A(f"v_sub_f32 v{vT0}, v{vT0}, v{vT1}")
        A(f"v_and_b32 v{vT2}, 0xffff0000, v{vT0}")
        A(f"v_sub_f32 v{vT0}, v{vT0}, v{vT2}")
        A(f"v_lshrrev_b32 v{vT1}, 16, v{vT1}")
        A(f"v_or_b32 v{vT1}, v{vT1}, v{vT2}")
        A(f"v_lshrrev_b32 v{vT0}, 16, v{vT0}")
        A(f"v_cndmask_b32 v{Q1[j]}, v{vT1}, v{Q1[j]}, s[{sLo}:{sLo+1}]")
        A(f"v_cndmask_b32 v{Q1[j]+1}, v{vT0}, v{Q1[j]+1}, s[{sLo}:{sLo+1}]")
    for j in range(4):
        maxred(MX + j, tmpS[j], True)
    A(f"s_add_u32 s{sK0}, s{sK0}, 81920")
    A(f"s_add_u32 s{sK1}, s{sK1}, 81920")
    A(f"s_add_u32 s{sV}, s{sV}, 40960")
    loadK(1, sK0, sK1)
    for j in range(4):
        crosshalf_max(MX + j)
        A(f"v_add_f32 v{MX+j}, 0x{f2u(OFF):08x}, v{MX+j}")
        set_m(j, MX + j)
    stamp(14)
    A.label("k2_run")
    for j in range(4):
        for i in range(16):
            A(f"v_mov_b32 v{O[j]+i}, 0")
    for i in range(8):
        A(f"v_mov_b32 v{E+i}, 0")
        A(f"v_mov_b32 v{P+i}, 0")
    A(f"s_add_u32 s{sK0}, s{sK0}, 81920")
    A(f"s_add_u32 s{sK1}, s{sK1}, 81920")
    A("s_waitcnt vmcnt(4)")
    A(f"v_mfma_f32_32x32x16_bf16 {v(S[0],16)}, {v(K0[0],4)}, {v(Q0[0],4)}, 0")
    A(f"v_mfma_f32_32x32x8_bf16 {v(S[0],16)}, {v(K1[0],2)}, {v(Q1[0],2)}, {v(S[0],16)}")
    A(f"s_mov_b32 s{sCnt}, 8")
    A("s_nop 7")
    A("s_nop 1")
    stamp(9)
    A.raw(".p2align 6")
    A.label("k2_loop")
    A0 = A
    def A(t):
        if "nopv" in var and t.startswith("v_mfma") and any(t.startswith(f"v_mfma_f32_32x32x16_bf16 {v(o,16)}") for o in O): return
        if "noqk" in var and t.startswith("v_mfma") and any(v(o,16) in t.split(",")[0] for o in S): return
        if "noexp" in var and t.startswith("v_exp"): return
        if "nocvt" in var and t.startswith("v_cvt"): return
        if "nold" in var and t.startswith("buffer_load"): return
        A0(t)
    def cvt(p, e):
        A(f"v_cvt_pk_bf16_f32 v{P+p}, v{E+e}, v{E+e+1}")
    def exps(cur, r0, e0):
        for i in range(4):
            A(f"v_exp_f32 v{E+e0+i}, v{S[cur]+r0+i}")
    for b in range(2):
        for j in range(4):
            n = 4 * b + j
            cur = n & 1; nxt = cur ^ 1
            kb, jn = (b, j + 1) if j < 3 else (b ^ 1, 0)
            vb, jp = (b, j - 1) if j > 0 else (b ^ 1, 3)
            if j == 3:
                A("s_waitcnt vmcnt(2)")
            A(f"v_mfma_f32_32x32x16_bf16 {v(S[nxt],16)}, {v(K0[kb],4)}, {v(Q0[jn],4)}, 0")
            cvt(6, 4); cvt(7, 6); exps(cur, 0, 0)
            A(f"v_mfma_f32_32x32x16_bf16 {v(O[jp],16)}, {v(V[vb]+4,4)}, {v(P+4,4)}, {v(O[jp],16)}")
            cvt(0, 0); cvt(1, 2); exps(cur, 4, 4)
            A(f"v_mfma_f32_32x32x8_bf16 {v(S[nxt],16)}, {v(K1[kb],2)}, {v(Q1[jn],2)}, {v(S[nxt],16)}")
            if j == 0:
                loadV(b ^ 1, sV)
                A(f"s_add_u32 s{sV}, s{sV}, 40960")
            if j == 3:
                loadK(b, sK0, sK1)
                A(f"s_add_u32 s{sK0}, s{sK0}, 81920")
                A(f"s_add_u32 s{sK1}, s{sK1}, 81920")
            cvt(2, 4); cvt(3, 6); exps(cur, 8, 0)
            if j == 0:
                A("s_waitcnt vmcnt(4)")
            A(f"v_mfma_f32_32x32x16_bf16 {v(O[j],16)}, {v(V[b],4)}, {v(P,4)}, {v(O[j],16)}")
            cvt(4, 0); cvt(5, 2); exps(cur, 12, 4)
    A = A0
    if ts: A(f"s_mov_b32 m0, s{sCnt}")
    stamp("m0")
    A(f"s_sub_u32 s{sCnt}, s{sCnt}, 1")
    A(f"s_cmp_lg_u32 s{sCnt}, 0")
    A("s_cbranch_scc1 k2_loop")

    cvt(6, 4); cvt(7, 6)
    A("s_nop 1")
    A(f"v_mfma_f32_32x32x16_bf16 {v(O[3],16)}, {v(V[1]+4,4)}, {v(P+4,4)}, {v(O[3],16)}")
    A(f"s_mul_i32 s{sT0}, s{sKs}, {8*3072}")
    A(f"s_mul_i32 s{sT1}, s{sQg}, {4*3072}")
    A(f"s_add_u32 s{sT0}, s{sT0}, s{sT1}")
    A(f"v_add_u32 v{vLds}, s{sT0}, v{vOffL}")
    for j in range(4):
        if j == 3:
            A("s_nop 7")
        for q in range(3):
            A(f"ds_write_b128 v{vLds}, {v(O[j]+4*q,4)} offset:{j*3072+q*1024}")
    A("s_waitcnt lgkmcnt(0)")
    A("s_barrier")
    A(f"s_mul_i32 s{sT0}, s{sKs}, 3072")
    A(f"s_add_u32 s{sT0}, s{sT0}, s{sT1}")
    A(f"v_add_u32 v{vLds}, s{sT0}, v{vOffL}")
    A(f"v_add_u32 v{vT3}, {2*8*3072}, v{vLds}")
    for k in range(4):
        for q in range(3):
            base = vLds if k < 2 else vT3
            A(f"ds_read_b128 {v(O[k]+4*q,4)}, v{base} offset:{(k&1)*8*3072+q*1024}")
    A("s_waitcnt lgkmcnt(6)")
    for i in range(12):
        A(f"v_add_f32 v{O[0]+i}, v{O[0]+i}, v{O[1]+i}")
    A("s_waitcnt lgkmcnt(0)")
    for i in range(12):
        A(f"v_add_f32 v{O[2]+i}, v{O[2]+i}, v{O[3]+i}")
    for i in range(12):
        A(f"v_add_f32 v{O[0]+i}, v{O[0]+i}, v{O[2]+i}")
    A(f"v_mov_b32 v{vT0}, v{O[0]+8}")
    A(f"v_mov_b32 v{vT1}, v{O[0]+8}")
    A("s_nop 1")
    A(f"v_permlane32_swap_b32 v{vT0}, v{vT1}")
    A("s_nop 1")
    A(f"v_rcp_f32 v{vT1}, v{vT1}")
    for i in range(12):
        A(f"v_and_b32 v{O[1]+i}, 0x7fffffff, v{O[0]+i}")
    A(f"v_min3_u32 v{vT2}, v{O[1]}, v{O[1]+1}, v{O[1]+2}")
    A(f"v_max3_u32 v{vT3}, v{O[1]}, v{O[1]+1}, v{O[1]+2}")
    for i in range(3, 11, 2):
        A(f"v_min3_u32 v{vT2}, v{vT2}, v{O[1]+i}, v{O[1]+i+1}")
        A(f"v_max3_u32 v{vT3}, v{vT3}, v{O[1]+i}, v{O[1]+i+1}")
    A(f"v_min_u32 v{vT2}, v{vT2}, v{O[1]+11}")
    A(f"v_max_u32 v{vT3}, v{vT3}, v{O[1]+11}")
    for i in range(12):
        A(f"v_mul_f32 v{O[0]+i}, v{O[0]+i}, v{vT1}")
    for i in range(6):
        A(f"v_cvt_pk_bf16_f32 v{P+i}, v{O[0]+2*i}, v{O[0]+2*i+1}")
    A(f"v_bfe_u32 v{vT0}, v{vLane}, 4, 1")
    A(f"v_mul_u32_u24 v{vT0}, 20480, v{vT0}")
    A(f"v_lshrrev_b32 v{vT1}, 5, v{vLane}")
    A(f"v_lshl_add_u32 v{vT0}, v{vT1}, 8, v{vT0}")
    A(f"v_and_b32 v{vT1}, 15, v{vLane}")
    A(f"v_lshl_add_u32 v{vT0}, v{vT1}, 4, v{vT0}")
    A(f"s_lshl_b32 s{sT0}, s{sQgrp}, 3")
    A(f"s_lshl_b32 s{sT1}, s{sQg}, 2")
    A(f"s_add_u32 s{sT0}, s{sT0}, s{sT1}")
    A(f"s_add_u32 s{sT0}, s{sT0}, s{sKs}")
    A(f"s_mul_i32 s{sT0}, s{sT0}, 40960")
    A(f"s_lshl_b32 s{sT1}, s{sHd}, 9")
    A(f"s_add_u32 s{sT1}, s{sT1}, s{sT0}")
    A(f"buffer_store_dwordx4 {v(P,4)}, v{vT0}, s[16:19], s{sT1} offen sc1")
    A(f"s_lshr_b32 s{sT1}, s{sHd}, 3")
    A(f"s_lshl_b32 s{sT1}, s{sT1}, 10")
    A(f"s_add_u32 s{sT0}, s{sT0}, s{sT1}")
    A(f"s_and_b32 s{sT1}, s{sHd}, 3")
    A(f"s_lshl_b32 s{sT1}, s{sT1}, 8")
    A(f"s_add_u32 s{sT0}, s{sT0}, s{sT1}")
    A(f"s_and_b32 s{sT1}, s{sHd}, 4")
    A(f"s_lshl_b32 s{sT1}, s{sT1}, 1")
    A(f"s_add_u32 s{sT0}, s{sT0}, s{sT1}")
    A(f"s_add_u32 s{sT0}, s{sT0}, {16*1024}")
    A(f"s_mov_b64 exec, s[{sLo}:{sLo+1}]")
    A(f"buffer_store_dwordx2 {v(P+4,2)}, v{vT0}, s[16:19], s{sT0} offen sc1")
    A("s_mov_b64 exec, -1")
    A(f"s_cmp_lg_u32 s{sPass}, 0")
    A("s_cbranch_scc1 k2_exit")
    if var: A("s_branch k2_exit")
    LO = (127 - 100) << 23
    HI = (127 + 120) << 23
    if force_fallback:
        LO = HI
    A(f"v_cmp_gt_u32 vcc, 0x{LO:08x}, v{vT2}")
    A(f"v_cndmask_b32 v{vT0}, 0, 1, vcc")
    A(f"v_cmp_lt_u32 vcc, 0x{HI:08x}, v{vT3}")
    A(f"v_mov_b32 v{vT1}, {LDS_FLAG}")
    A("s_nop 0")
    A(f"v_cndmask_b32 v{vT0}, v{vT0}, 1, vcc")
    A(f"ds_or_b32 v{vT1}, v{vT0}")
    A("s_waitcnt lgkmcnt(0)")
    A("s_barrier")
    A(f"ds_read_b32 v{vT0}, v{vT1}")
    A("s_waitcnt lgkmcnt(0)")
    A(f"v_readfirstlane_b32 s{sT0}, v{vT0}")
    A("s_nop 3")
    A(f"s_cmp_eq_u32 s{sT0}, 0")
    A("s_cbranch_scc1 k2_exit")
    A(f"s_mov_b32 s{sPass}, 1")
    A("s_waitcnt vmcnt(0)")
    for j in range(4):
        A(f"v_cndmask_b32 v{Q1[j]}, 0, v{Q1[j]}, s[{sLo}:{sLo+1}]")
        A(f"v_cndmask_b32 v{Q1[j]+1}, 0, v{Q1[j]+1}, s[{sLo}:{sLo+1}]")
        A(f"v_mov_b32 v{MX+j}, 0xff800000")
    A(f"s_mov_b32 s{sK0}, s{sK0b}")
    A(f"s_mov_b32 s{sK1}, s{sK1b}")
    A(f"s_mov_b32 s{sCnt}, 16")
    A.label("k2_fb_loop")
    loadK(0, sK0, sK1)
    A(f"s_add_u32 s{sK0}, s{sK0}, 81920")
    A(f"s_add_u32 s{sK1}, s{sK1}, 81920")
    A("s_waitcnt vmcnt(0)")
    for j in range(4):
        A(f"v_mfma_f32_32x32x16_bf16 {v(O[j],16)}, {v(K0[0],4)}, {v(Q0[j],4)}, 0")
    for j in range(4):
        A(f"v_mfma_f32_32x32x8_bf16 {v(O[j],16)}, {v(K1[0],2)}, {v(Q1[j],2)}, {v(O[j],16)}")
    A("s_nop 7")
    A("s_nop 3")
    for j in range(4):
        maxred(MX + j, O[j], False)
    A(f"s_sub_u32 s{sCnt}, s{sCnt}, 1")
    A(f"s_cmp_lg_u32 s{sCnt}, 0")
    A("s_cbranch_scc1 k2_fb_loop")
    A(f"s_lshl_b32 s{sT0}, s{sW}, 10")
    A(f"s_add_u32 s{sT0}, s{sT0}, {LDS_MX}")
    A(f"v_add_u32 v{vLds}, s{sT0}, v{vOffL}")
    A(f"ds_write_b128 v{vLds}, {v(MX,4)}")
    A("s_waitcnt lgkmcnt(0)")
    A("s_barrier")
    A(f"s_lshl_b32 s{sT0}, s{sQg}, 10")
    A(f"s_add_u32 s{sT0}, s{sT0}, {LDS_MX}")
    A(f"v_add_u32 v{vLds}, s{sT0}, v{vOffL}")
    for k in range(4):
        A(f"ds_read_b128 {v(O[0]+4*k,4)}, v{vLds} offset:{k*2048}")
    A("s_waitcnt lgkmcnt(0)")
    for j in range(4):
        A(f"v_max3_f32 v{MX+j}, v{O[0]+j}, v{O[0]+4+j}, v{O[0]+8+j}")
        A(f"v_max_f32 v{MX+j}, v{MX+j}, v{O[0]+12+j}")
        crosshalf_max(MX + j)
        set_m(j, MX + j)
    A(f"s_mov_b32 s{sK0}, s{sK0b}")
    A(f"s_mov_b32 s{sK1}, s{sK1b}")
    A(f"s_mov_b32 s{sV}, s{sVb}")
    loadK(0, sK0, sK1)
    loadV(0, sV)
    A(f"s_add_u32 s{sK0}, s{sK0}, 81920")
    A(f"s_add_u32 s{sK1}, s{sK1}, 81920")
    A(f"s_add_u32 s{sV}, s{sV}, 40960")
    loadK(1, sK0, sK1)
    A("s_branch k2_run")
    A.label("k2_exit")
    if ts:
        A("s_cmp_ge_u32 s2, 256")
        A("s_cbranch_scc1 k2_exit2")
        stamp(10)
        srd(A, 8, 4, 5, WS_TS, 1 << 20)
        A(f"s_lshl_b32 s3, s2, 3")
        A(f"s_add_u32 s3, s3, s{sW}")
        A(f"s_lshl_b32 s3, s3, 7")
        A(f"v_lshlrev_b32 v2, 2, v{vLane}")
        A("s_mov_b64 exec, 0xffff")
        A(f"buffer_store_dword v{vTS}, v2, s[8:11], s3 offen")
        A(f"buffer_store_dword v{vTR}, v2, s[8:11], s3 offen offset:64")
        A.label("k2_exit2")
    A("s_endpgm")
    lds = LDS_MX + 8192
    return kernel_wrap(name, A.text(), nv), lds, nv

if __name__ == "__main__":
    t, lds, nv = gen_k2()
    print(lds, nv)
```

```python
from asmlib import *

def gen_k3(name="outp_kernel", ts=False, var="", RING=6):
    A = Asm()
    R = Alloc(2)
    vLane = 1
    vTS = R(); vTR = R()
    ST = Stamper(A, ts, vTS, vTR)
    vT = [R() for _ in range(4)]
    vH = [R() for _ in range(4)]
    vO = [R() for _ in range(4)]
    vB = [R(), R()]
    vX = R()
    XR = [R(2) for _ in range(5)]
    FA = [[R(4, 4) for _ in range(4)] for _ in range(RING)]
    FB = [[R(4, 4) for _ in range(5)] for _ in range(RING)]
    nv = R.p
    assert nv <= 256
    ACC = [[4 * (5 * i + j) for j in range(5)] for i in range(4)]
    sW, sMt, sNt, sT0, sT1, sT2, sA, sB, sAo, sXo = 32, 33, 34, 35, 36, 37, 38, 39, 40, 41
    A("s_cmp_ge_u32 s2, 256")
    A("s_cbranch_scc1 k3_exit")
    A("s_load_dwordx2 s[4:5], s[0:1], 0")
    A("s_load_dwordx2 s[6:7], s[0:1], 48")
    A("s_load_dwordx2 s[8:9], s[0:1], 64")
    A(f"v_lshrrev_b32 v{vT[0]}, 6, v0")
    A(f"v_and_b32 v{vLane}, 63, v0")
    A(f"s_and_b32 s{sT0}, s2, 7")
    A(f"v_readfirstlane_b32 s{sW}, v{vT[0]}")
    ST(0)
    A(f"s_lshr_b32 s{sT1}, s2, 3")
    A(f"s_lshr_b32 s{sMt}, s{sT0}, 1")
    A(f"s_lshl_b32 s{sMt}, s{sMt}, 3")
    A(f"s_and_b32 s{sT2}, s{sT1}, 7")
    A(f"s_add_u32 s{sMt}, s{sMt}, s{sT2}")
    A(f"s_and_b32 s{sNt}, s{sT0}, 1")
    A(f"s_lshl_b32 s{sNt}, s{sNt}, 2")
    A(f"s_lshr_b32 s{sT2}, s{sT1}, 3")
    A(f"s_add_u32 s{sNt}, s{sNt}, s{sT2}")
    A(f"v_lshlrev_b32 v{vB[0]}, 4, v{vLane}")
    A(f"v_add_u32 v{vB[1]}, 4096, v{vB[0]}")
    for i in range(4):
        A(f"v_add_u32 v{vH[i]}, {i*54*1024}, v{vB[0]}")
        A(f"v_add_u32 v{vO[i]}, {i*20*1024}, v{vB[0]}")
    A(f"s_mul_i32 s{sA}, s{sMt}, {4*54*1024}")
    A(f"s_lshl_b32 s{sT0}, s{sW}, 10")
    A(f"s_add_u32 s{sA}, s{sA}, s{sT0}")
    A(f"s_mul_i32 s{sAo}, s{sMt}, {4*20*1024}")
    A(f"s_add_u32 s{sAo}, s{sAo}, s{sT0}")
    A(f"s_add_u32 s{sAo}, s{sAo}, {WS_OF - WS_H - 54*1024}")
    A(f"s_mul_i32 s{sB}, s{sW}, 40960")
    A(f"s_mul_i32 s{sT0}, s{sNt}, 5120")
    A(f"s_add_u32 s{sB}, s{sB}, s{sT0}")
    A(f"v_and_b32 v{vT[0]}, 15, v{vLane}")
    A(f"v_mul_u32_u24 v{vT[0]}, 1280, v{vT[0]}")
    A(f"v_lshrrev_b32 v{vT[1]}, 4, v{vLane}")
    A(f"v_lshl_add_u32 v{vX}, v{vT[1]}, 3, v{vT[0]}")
    A(f"s_lshl_b32 s{sXo}, s{sMt}, 2")
    A(f"s_add_u32 s{sXo}, s{sXo}, s{sW}")
    A(f"s_mul_i32 s{sXo}, s{sXo}, {16*1280}")
    A(f"s_mul_i32 s{sT0}, s{sNt}, 160")
    A(f"s_add_u32 s{sXo}, s{sXo}, s{sT0}")
    A("s_waitcnt lgkmcnt(0)")
    srd(A, 12, 8, 9, WS_H, WS_OF - WS_H + SZ_OF)
    srd(A, 16, 8, 9, WS_WF, SZ_WF)
    srd(A, 20, 4, 5, 0, 2048 * 1280)
    srd(A, 24, 6, 7, 0, 2048 * 1280)
    order = [18, 17, 16, 15, 14, 13] + list(range(13))
    def loads(k):
        u = order[k]; r = k % RING
        if u == 13:
            A(f"s_cmp_ge_u32 s{sW}, 2")
            A(f"s_cselect_b32 s{sT0}, s{sAo}, s{sA}")
            A(f"s_cselect_b64 vcc, -1, 0")
            A(f"s_add_u32 s{sT0}, s{sT0}, {u*4096}")
            for i in range(4):
                A(f"v_cndmask_b32 v{vT[i]}, v{vH[i]}, v{vO[i]}, vcc")
            va = vT
        else:
            A(f"s_add_u32 s{sT0}, s{sA if u < 13 else sAo}, {u*4096}")
            va = vH if u < 13 else vO
        A(f"s_add_u32 s{sT1}, s{sB}, {u*4*40960}")
        L = []
        for i in range(4):
            L.append(f"buffer_load_dwordx4 {v(FA[r][i],4)}, v{va[i]}, s[12:15], s{sT0} offen")
        for j in range(5):
            L.append(f"buffer_load_dwordx4 {v(FB[r][j],4)}, v{vB[j>>2]}, s[16:19], s{sT1} offen offset:{(j&3)*1024}")
        return L
    n = len(order)
    A(f"s_cmp_ge_u32 s{sW}, 2")
    A("s_cbranch_scc1 k3_skipl")
    for t in loads(0): A(t)
    A.label("k3_skipl")
    for k in range(1, RING):
        for t in loads(k): A(t)
    for i in range(80):
        A(f"v_accvgpr_write_b32 a{i}, 0")
    ST(1)
    for k in range(n):
        r = k % RING
        later = min(n - 1 - k, RING - 1) * 9 + (5 if k + RING > n else 0)
        if k == 0:
            A(f"s_cmp_ge_u32 s{sW}, 2")
            A("s_cbranch_scc1 k3_skipm")
        A(f"s_waitcnt vmcnt({later})")
        if k == 0: ST(2)
        for j in range(5):
            for i in range(4):
                A(f"v_mfma_f32_16x16x32_bf16 {a(ACC[i][j],4)}, {v(FB[r][j],4)}, {v(FA[r][i],4)}, {a(ACC[i][j],4)}")
        if k == 0:
            A.label("k3_skipm")
        if k + RING < n:
            for t in loads(k + RING): A(t)
        elif k + RING == n:
            for j in range(5):
                A(f"buffer_load_dwordx2 {v(XR[j],2)}, v{vX}, s[20:23], s{sXo} offen offset:{j*32}")
    ST(3)
    A(f"s_mul_i32 s{sT0}, s{sW}, 5120")
    A(f"v_add_u32 v{vT[0]}, s{sT0}, v{vB[0]}")
    T = FA[0][0]
    for i in range(4):
        A(f"s_cmp_eq_u32 s{sW}, {i}")
        A(f"s_cbranch_scc1 k3_own{i}")
        if i == 0: A("s_nop 7")
        for j in range(5):
            A(f"ds_write_b128 v{vT[0]}, {a(ACC[i][j],4)} offset:{i*20480 + j*1024}") if i < 3 else None
        if i == 3:
            A(f"v_add_u32 v{vT[1]}, {3*20480}, v{vT[0]}")
            for j in range(5):
                A(f"ds_write_b128 v{vT[1]}, {a(ACC[i][j],4)} offset:{j*1024}")
        A(f"s_branch k3_nx{i}")
        A.label(f"k3_own{i}")
        if i == 0: A("s_nop 7")
        for q in range(20):
            A(f"v_accvgpr_read_b32 v{T+q}, a{ACC[i][0]+q}")
        A.label(f"k3_nx{i}")
    A("s_waitcnt lgkmcnt(0)")
    A("s_barrier")
    A(f"s_mul_i32 s{sT0}, s{sW}, 20480")
    A(f"v_add_u32 v{vT[0]}, s{sT0}, v{vB[0]}")
    U = T + 20
    for d in range(1, 4):
        A(f"s_add_u32 s{sT0}, s{sW}, {d}")
        A(f"s_and_b32 s{sT0}, s{sT0}, 3")
        A(f"s_mul_i32 s{sT0}, s{sT0}, 5120")
        A(f"v_add_u32 v{vT[1]}, s{sT0}, v{vT[0]}")
        for j in range(5):
            A(f"ds_read_b128 {v(U+20*(d-1)+4*j,4)}, v{vT[1]} offset:{j*1024}")
    A("s_waitcnt vmcnt(0)")
    W = U + 60
    for j in range(5):
        for e in range(2):
            A(f"v_lshlrev_b32 v{W+4*j+2*e}, 16, v{XR[j]+e}")
            A(f"v_and_b32 v{W+4*j+2*e+1}, 0xffff0000, v{XR[j]+e}")
    for q in range(20):
        A(f"v_add_f32 v{T+q}, v{T+q}, v{W+q}")
    for d in range(3):
        A(f"s_waitcnt lgkmcnt({10-5*d})")
        for q in range(20):
            A(f"v_add_f32 v{T+q}, v{T+q}, v{U+20*d+q}")
    for j in range(5):
        A(f"v_cvt_pk_bf16_f32 v{XR[j]}, v{T+4*j}, v{T+4*j+1}")
        A(f"v_cvt_pk_bf16_f32 v{XR[j]+1}, v{T+4*j+2}, v{T+4*j+3}")
    for j in range(5):
        A(f"buffer_store_dwordx2 {v(XR[j],2)}, v{vX}, s[24:27], s{sXo} offen offset:{j*32}")
    ST(4)
    ST.dump(8, sW, 4, slot=2)
    A.label("k3_exit")
    A("s_endpgm")
    return kernel_wrap(name, A.text(), 256 + 80, accum=256), 81920, nv

if __name__ == "__main__":
    t, lds, nv = gen_k3()
    print(lds, nv, len(t.split("\n")))
```

```python
import sys
from asmlib import *
HDR = open("parallel_sum__softmax_full_mha__dense_activation_relu__prompt.s.ref").read().split("; Override launch")[0]
def emit(path, ks):
    s = HDR
    for (n, t, g, b, l) in ks:
        s += f"; @launch kernel={n} grid=({g},1,1) block=({b},1,1) lds={l}\n"
    s += '.amdgcn_target "amdgcn-amd-amdhsa--gfx950"\n'
    seen = set()
    for (n, t, g, b, l) in ks:
        if n not in seen:
            s += t; seen.add(n)
    open(path, "w").write(s)
```

```python
from mk import *
from k1 import gen_k1
from k2 import gen_k2
from k3 import gen_k3
import sys
def build(path, ts=False, **kw):
    t1, l1, _ = gen_k1(ts=ts)
    t2, l2, _ = gen_k2(ts=False)
    t3, l3, _ = gen_k3(ts=ts)
    emit(path, [("proj_kernel", t1, 256, 512, l1), ("attn_kernel", t2, 256, 512, l2), ("outp_kernel", t3, 256, 256, l3)])
build("all.s")
build("all_ts.s", ts=True)
t3, l3, _ = gen_k3(ts=True)
emit("k3.s", [("outp_kernel", t3, 256, 256, l3)])
```

```python
from asmlib import *
import struct
def f2u(x): return struct.unpack("<I", struct.pack("<f", x))[0]

WS_YB = WS_Y; SZ_YB = 128 * 40 * 512

def gen_k2(name="attn_kernel", OFF=96.0, force_fallback=False, ts=False, var="", gemm=True,
           GU=9, GD=9, GH=3, gprio=0, bprio=1, sw=1, aprio=0, gp0=3, gp1=None):
    A = Asm()
    var = var.split(",")
    R = Alloc(1)
    vOffL = 0
    vOffV = R(); vT0 = R(); vT1 = R(); vT2 = R(); vT3 = R()
    vTS = R(); vTR = R()
    ST = Stamper(A, ts, vTS, vTR)
    O = [R(16, 4) for _ in range(4)]
    Q0 = [R(4, 4) for _ in range(4)]
    Q1 = [R(2) for _ in range(4)]
    K0 = [R(4, 4) for _ in range(2)]
    K1 = [R(2) for _ in range(2)]
    V = [R(8, 4) for _ in range(2)]
    S = [R(16, 4) for _ in range(2)]
    P = R(8, 4)
    nv = R.p
    MX = P + 4
    sW, sHd, sQgrp, sQg, sKs = 20, 21, 22, 23, 24
    sK0, sK1, sV, sCnt, sV2 = 25, 26, 27, 28, 29
    sLo, sVm = 30, 32
    sPass = 34
    sK0b, sK1b, sVb = 35, 36, 37
    sT0, sT1, sT2 = 38, 39, 40
    sQ0, sQ1, sOn = 41, 42, 44
    sC20, sC40, sC80 = 46, 47, 48
    LDS_G = 73728
    LDS_FLAG = LDS_G + 61440
    LDS_MX = LDS_FLAG + 64
    lds = LDS_MX + 8192

    A("s_cmp_ge_u32 s2, 256")
    A("s_cbranch_scc1 k2_exit")
    A("s_load_dwordx2 s[4:5], s[0:1], 64")
    A("s_load_dwordx2 s[6:7], s[0:1], 0")
    A(f"v_lshrrev_b32 v{vT0}, 6, v0")
    A(f"v_and_b32 v{vT3}, 63, v0")
    A(f"s_and_b32 s{sT0}, s2, 7")
    A(f"v_readfirstlane_b32 s{sW}, v{vT0}")
    ST(0)
    A(f"s_lshl_b32 s{sHd}, s{sT0}, 2")
    A(f"s_bfe_u32 s{sT0}, s2, 0x20003")
    A(f"s_add_u32 s{sHd}, s{sHd}, s{sT0}")
    A(f"s_lshr_b32 s{sQgrp}, s2, 5")
    A(f"v_lshlrev_b32 v{vOffL}, 4, v{vT3}")
    A(f"s_mul_i32 s{sT0}, s{sHd}, 5")
    if gemm:
        A(f"s_cmp_ge_u32 s{sW}, 8")
        A("s_cbranch_scc1 k2_gemm")
    A(f"s_and_b32 s{sQg}, s{sW}, 1")
    A(f"s_lshr_b32 s{sKs}, s{sW}, 1")
    if aprio: A(f"s_setprio {aprio}")
    A(f"s_cmp_lt_u32 s{sW}, 4")
    A("s_cbranch_scc1 k2_old")
    A(f"s_setprio {bprio}")
    A.label("k2_old")
    if "pts" in var: ST(2)
    A(f"s_mov_b32 s{sLo}, -1")
    A(f"s_mov_b32 s{sLo+1}, 0")
    A(f"s_mov_b32 s{sVm}, 0xfffff")
    A(f"s_mov_b32 s{sVm+1}, 0xfffff")
    A(f"s_mov_b32 s{sOn}, 0x100000")
    A(f"s_mov_b32 s{sOn+1}, 0x100000")
    A(f"s_mov_b32 s{sPass}, 0")
    A(f"s_movk_i32 s{sC20}, 20480")
    A(f"s_mov_b32 s{sC40}, 40960")
    A(f"s_mov_b32 s{sC80}, 81920")
    A(f"s_add_u32 s{sT1}, s{sT0}, 1")
    A(f"s_lshr_b32 s{sT1}, s{sT1}, 1")
    A(f"s_lshl_b32 s{sQ0}, s{sT1}, 9")
    A(f"s_lshr_b32 s{sT1}, s{sT0}, 1")
    A(f"s_lshl_b32 s{sT1}, s{sT1}, 9")
    A(f"s_and_b32 s{sT2}, s{sHd}, 1")
    A(f"s_cmp_eq_u32 s{sT2}, 0")
    A(f"s_cselect_b32 s{sT2}, 1024, 8")
    A(f"s_add_u32 s{sQ1}, s{sT1}, s{sT2}")
    A(f"s_add_u32 s{sK0b}, s{sQ0}, {80*512}")
    A(f"s_add_u32 s{sK1b}, s{sQ1}, {80*512}")
    A(f"s_mul_i32 s{sVb}, s{sHd}, 320")
    A(f"v_lshrrev_b32 v{vT0}, 5, v{vT3}")
    A(f"v_mul_u32_u24 v{vT0}, 10240, v{vT0}")
    A(f"v_and_b32 v{vT1}, 31, v{vT3}")
    A(f"v_lshl_add_u32 v{vOffV}, v{vT1}, 4, v{vT0}")
    A(f"v_mov_b32 v{vT0}, 0x3f803f80")
    for b in range(2):
        A(f"v_mov_b32 v{K1[b]}, v{vT0}")
        A(f"v_mov_b32 v{K1[b]+1}, 0x3f80")
    A(f"v_cndmask_b32 v{V[0]}, 0, v{vT0}, s[{sOn}:{sOn+1}]")
    for j in range(4):
        A(f"v_mov_b32 v{Q1[j]}, 0")
        A(f"v_mov_b32 v{Q1[j]+1}, 0")
    for i in range(1, 16):
        A(f"v_mov_b32 v{V[0]+i}, v{V[0]}")
    A(f"s_lshl_b32 s{sT0}, s{sQgrp}, 3")
    A(f"s_lshl_b32 s{sT1}, s{sQg}, 2")
    A(f"s_add_u32 s{sT0}, s{sT0}, s{sT1}")
    A(f"s_mul_i32 s{sT0}, s{sT0}, 81920")
    A(f"s_add_u32 s{sQ0}, s{sQ0}, s{sT0}")
    A(f"s_add_u32 s{sQ1}, s{sQ1}, s{sT0}")
    A(f"s_mul_i32 s{sT0}, s{sKs}, {16*81920}")
    A(f"s_add_u32 s{sK0}, s{sK0b}, s{sT0}")
    A(f"s_add_u32 s{sK1}, s{sK1b}, s{sT0}")
    A(f"s_mul_i32 s{sT0}, s{sKs}, {16*40960}")
    A(f"s_add_u32 s{sVb}, s{sVb}, s{sT0}")
    A(f"s_mov_b32 s{sV}, s{sVb}")
    A(f"s_add_u32 s{sV2}, s{sVb}, 20480")
    if "pts" in var: ST(3)
    A("s_waitcnt lgkmcnt(0)")
    srd(A, 8, 4, 5, WS_QK, SZ_QK)
    srd(A, 12, 4, 5, WS_VT, SZ_VT)
    def loadK(b, s0, s1):
        A(f"buffer_load_dwordx4 {v(K0[b],4)}, v{vOffL}, s[8:11], s{s0} offen")
        A(f"s_mov_b64 exec, s[{sLo}:{sLo+1}]")
        A(f"buffer_load_dwordx2 {v(K1[b],2)}, v{vOffL}, s[8:11], s{s1} offen")
        A("s_mov_b64 exec, -1")
    def loadV(b):
        A(f"s_mov_b64 exec, s[{sVm}:{sVm+1}]")
        A(f"buffer_load_dwordx4 {v(V[b],4)}, v{vOffV}, s[12:15], s{sV} offen")
        A(f"buffer_load_dwordx4 {v(V[b]+4,4)}, v{vOffV}, s[12:15], s{sV2} offen")
        A("s_mov_b64 exec, -1")
    def advK():
        A(f"s_add_u32 s{sK0}, s{sK0}, 81920")
        A(f"s_add_u32 s{sK1}, s{sK1}, 81920")
    def advV():
        A(f"s_add_u32 s{sV}, s{sV}, 40960")
        A(f"s_add_u32 s{sV2}, s{sV2}, 40960")
    loadK(1, sK0b, sK1b)
    if "pts" in var: ST(5)
    for j in range(4):
        A(f"s_add_u32 s{sT0}, s{sKs}, {j}")
        A(f"s_and_b32 s{sT0}, s{sT0}, 3")
        A(f"s_mul_i32 s{sT0}, s{sT0}, 81920")
        A(f"s_add_u32 s{sT1}, s{sT0}, s{sQ0}")
        A(f"s_add_u32 s{sT0}, s{sT0}, s{sQ1}")
        A(f"buffer_load_dwordx4 {v(Q0[j],4)}, v{vOffL}, s[8:11], s{sT1} offen")
        A(f"s_mov_b64 exec, s[{sLo}:{sLo+1}]")
        A(f"buffer_load_dwordx2 {v(Q1[j],2)}, v{vOffL}, s[8:11], s{sT0} offen")
        A("s_mov_b64 exec, -1")
    if "pts" in var: ST(6)
    A(f"s_mov_b32 s{sK0b}, s{sK0}")
    A(f"s_mov_b32 s{sK1b}, s{sK1}")
    loadK(0, sK0, sK1)
    loadV(0)
    advK(); advV()
    srd(A, 16, 4, 5, WS_OF, SZ_OF)
    A(f"v_mov_b32 v{vT0}, {LDS_FLAG}")
    A(f"v_mov_b32 v{vT1}, 0")
    A(f"ds_write_b32 v{vT0}, v{vT1}")
    ST(12)
    for j in range(4):
        A(f"s_waitcnt vmcnt({4 + 2*(3-j)})")
        A(f"v_mfma_f32_32x32x16_bf16 {v(O[j],16)}, {v(K0[1],4)}, {v(Q0[j],4)}, 0")
        A(f"v_mfma_f32_32x32x8_bf16 {v(O[j],16)}, {v(K1[1],2)}, {v(Q1[j],2)}, {v(O[j],16)}")
    ST(13)
    loadK(1, sK0, sK1)
    A("s_nop 3")
    def maxred(dst, src, init):
        if init:
            A(f"v_max3_f32 v{dst}, v{src}, v{src+1}, v{src+2}")
            A(f"v_max_f32 v{dst}, v{dst}, v{src+3}")
            st = 4
        else:
            st = 0
        for i in range(st, 16, 2):
            A(f"v_max3_f32 v{dst}, v{dst}, v{src+i}, v{src+i+1}")
    def finish_m(off):
        T = S[1]
        for j in range(4): A(f"v_mov_b32 v{T+j}, v{MX+j}")
        A("s_nop 0")
        for j in range(4): A(f"v_permlane32_swap_b32 v{MX+j}, v{T+j}")
        for j in range(4): A(f"v_max_f32 v{MX+j}, v{MX+j}, v{T+j}")
        for j in range(4): A(f"v_sub_f32 v{MX+j}, 0x{f2u(-off):08x}, v{MX+j}")
        for j in range(4): A(f"v_and_b32 v{T+j}, 0xffff0000, v{MX+j}")
        for j in range(4): A(f"v_sub_f32 v{MX+j}, v{MX+j}, v{T+j}")
        for j in range(4): A(f"v_and_b32 v{T+4+j}, 0xffff0000, v{MX+j}")
        for j in range(4): A(f"v_sub_f32 v{MX+j}, v{MX+j}, v{T+4+j}")
        for j in range(4): A(f"v_alignbit_b32 v{T+j}, v{T+4+j}, v{T+j}, 16" if False else f"v_lshrrev_b32 v{T+j}, 16, v{T+j}")
        for j in range(4): A(f"v_or_b32 v{T+j}, v{T+j}, v{T+4+j}")
        for j in range(4): A(f"v_lshrrev_b32 v{MX+j}, 16, v{MX+j}")
        for j in range(4): A(f"v_cndmask_b32 v{Q1[j]}, v{T+j}, v{Q1[j]}, s[{sLo}:{sLo+1}]")
        for j in range(4): A(f"v_cndmask_b32 v{Q1[j]+1}, v{MX+j}, v{Q1[j]+1}, s[{sLo}:{sLo+1}]")
    for j in range(4):
        maxred(MX + j, O[j], True)
    finish_m(OFF)
    ST(14)
    A.label("k2_run")
    for i in range(8):
        A(f"v_mov_b32 v{P+i}, 0")
    advK()
    A("s_waitcnt vmcnt(4)")
    A(f"v_mfma_f32_32x32x16_bf16 {v(S[0],16)}, {v(K0[0],4)}, {v(Q0[0],4)}, 0")
    A(f"v_mfma_f32_32x32x8_bf16 {v(S[0],16)}, {v(K1[0],2)}, {v(Q1[0],2)}, {v(S[0],16)}")
    for j in range(4):
        A(f"v_mfma_f32_32x32x16_bf16 {v(O[j],16)}, {v(P,4)}, {v(P,4)}, 0")
    A(f"s_mov_b32 s{sCnt}, 8")
    A("s_nop 6")
    ST(9)
    A.raw(".p2align 6")
    A.label("k2_loop")
    L0 = len(A.lines)
    def cvt(p, r):
        A(f"v_cvt_pk_bf16_f32 v{P+p}, v{r}, v{r+1}")
    def exps(r0):
        for i in range(4):
            A(f"v_exp_f32 v{r0+i}, v{r0+i}")
    for b in range(2):
        for j in range(4):
            n = 4 * b + j
            c = S[n & 1]; nx = S[(n & 1) ^ 1]
            kb, jn = (b, j + 1) if j < 3 else (b ^ 1, 0)
            vb, jp = (b, j - 1) if j > 0 else (b ^ 1, 3)
            A(f"v_mfma_f32_32x32x16_bf16 {v(nx,16)}, {v(K0[kb],4)}, {v(Q0[jn],4)}, 0")
            exps(c)
            A(f"v_mfma_f32_32x32x16_bf16 {v(O[jp],16)}, {v(V[vb]+4,4)}, {v(P+4,4)}, {v(O[jp],16)}")
            cvt(0, c); cvt(1, c + 2); exps(c + 4)
            A(f"v_mfma_f32_32x32x8_bf16 {v(nx,16)}, {v(K1[kb],2)}, {v(Q1[jn],2)}, {v(nx,16)}")
            if j == 0 and "nold" not in var:
                A(f"s_mov_b64 exec, s[{sVm}:{sVm+1}]")
                A(f"s_add_u32 s{sV2}, s{sV}, s{sC20}")
                A(f"buffer_load_dwordx4 {v(V[b^1],4)}, v{vOffV}, s[12:15], s{sV} offen")
                A(f"buffer_load_dwordx4 {v(V[b^1]+4,4)}, v{vOffV}, s[12:15], s{sV2} offen")
                A("s_mov_b64 exec, -1")
                A(f"s_add_u32 s{sV}, s{sV}, s{sC40}")
            if j == 3 and "nold" not in var:
                A(f"buffer_load_dwordx4 {v(K0[b],4)}, v{vOffL}, s[8:11], s{sK0} offen")
                A(f"s_mov_b64 exec, s[{sLo}:{sLo+1}]")
                A(f"s_add_u32 s{sK0}, s{sK0}, s{sC80}")
                A(f"buffer_load_dwordx2 {v(K1[b],2)}, v{vOffL}, s[8:11], s{sK1} offen")
                A("s_mov_b64 exec, -1")
                A(f"s_add_u32 s{sK1}, s{sK1}, s{sC80}")
            cvt(2, c + 4); cvt(3, c + 6); exps(c + 8)
            if j == 0 and "nold" not in var:
                A("s_waitcnt vmcnt(4)")
            A(f"v_mfma_f32_32x32x16_bf16 {v(O[j],16)}, {v(V[b],4)}, {v(P,4)}, {v(O[j],16)}")
            exps(c + 12)
            if j == 2 and "nold" not in var:
                A("s_waitcnt vmcnt(2)")
            cvt(4, c + 8); cvt(5, c + 10); cvt(6, c + 12); cvt(7, c + 14)
    if "noadv" in var: A.lines[L0:] = [l for l in A.lines[L0:] if not re.search(r"s_add_u32 s(\d+), s\1,", l)]
    if "noexec" in var: A.lines[L0:] = [l for l in A.lines[L0:] if "exec" not in l]
    if "nowait" in var: A.lines[L0:] = [l for l in A.lines[L0:] if "waitcnt" not in l]
    if "nok1" in var: A.lines[L0:] = [l for l in A.lines[L0:] if "dwordx2" not in l]
    if "noal" not in var:
        isizes(A.lines[L0:]); A.lines[L0:] = align8(A.lines[L0:])
    if ts: A(f"s_mov_b32 m0, s{sCnt}")
    if "pts" not in var: ST("m0")
    A(f"s_sub_u32 s{sCnt}, s{sCnt}, 1")
    A(f"s_cmp_lg_u32 s{sCnt}, {sw}")
    A("s_cbranch_scc1 k2_nosw")
    A(f"s_setprio {aprio}")
    A.label("k2_nosw")
    A(f"s_cmp_lg_u32 s{sCnt}, 0")
    A("s_cbranch_scc1 k2_loop")
    A(f"v_mfma_f32_32x32x16_bf16 {v(O[3],16)}, {v(V[1]+4,4)}, {v(P+4,4)}, {v(O[3],16)}")
    A(f"s_mul_i32 s{sT1}, s{sQg}, {4*9216}")
    for j in range(1, 4):
        A(f"s_add_u32 s{sT0}, s{sKs}, {j}")
        A(f"s_and_b32 s{sT0}, s{sT0}, 3")
        A(f"s_mul_i32 s{sT0}, s{sT0}, 9216")
        A(f"s_add_u32 s{sT0}, s{sT0}, s{sT1}")
        A(f"v_add_u32 v{vT0}, s{sT0}, v{vOffL}")
        for q in range(3):
            A(f"ds_write_b128 v{vT0}, {v(O[j]+4*q,4)} offset:{(j-1)*3072+q*1024}")
    A(f"s_mul_i32 s{sT0}, s{sKs}, 9216")
    A(f"s_add_u32 s{sT0}, s{sT0}, s{sT1}")
    A(f"v_add_u32 v{vT0}, s{sT0}, v{vOffL}")
    A(f"v_and_b32 v{vT1}, 0x100, v{vOffL}")
    A(f"v_mul_u32_u24 v{vT1}, 80, v{vT1}")
    A(f"v_lshrrev_b32 v{vT2}, 9, v{vOffL}")
    A(f"v_lshl_add_u32 v{vT1}, v{vT2}, 8, v{vT1}")
    A(f"v_and_b32 v{vT2}, 0xf0, v{vOffL}")
    A(f"v_add_u32 v{vOffV}, v{vT1}, v{vT2}" if False else f"v_add_u32 v{vT3}, v{vT1}, v{vT2}")
    A(f"s_lshl_b32 s{sT0}, s{sQgrp}, 3")
    A(f"s_lshl_b32 s{sT1}, s{sQg}, 2")
    A(f"s_add_u32 s{sT0}, s{sT0}, s{sT1}")
    A(f"s_add_u32 s{sT0}, s{sT0}, s{sKs}")
    A(f"s_mul_i32 s{sT0}, s{sT0}, 40960")
    A(f"s_lshl_b32 s{sT2}, s{sHd}, 9")
    A(f"s_add_u32 s{sT2}, s{sT2}, s{sT0}")
    A(f"s_lshr_b32 s{sT1}, s{sHd}, 3")
    A(f"s_lshl_b32 s{sT1}, s{sT1}, 10")
    A(f"s_add_u32 s{sT0}, s{sT0}, s{sT1}")
    A(f"s_and_b32 s{sT1}, s{sHd}, 3")
    A(f"s_lshl_b32 s{sT1}, s{sT1}, 8")
    A(f"s_add_u32 s{sT0}, s{sT0}, s{sT1}")
    A(f"s_and_b32 s{sT1}, s{sHd}, 4")
    A(f"s_lshl_b32 s{sT1}, s{sT1}, 1")
    A(f"s_add_u32 s{sT0}, s{sT0}, s{sT1}")
    A(f"s_add_u32 s{sT0}, s{sT0}, {16*1024}")
    A("s_waitcnt lgkmcnt(0)")
    ST(15)
    A("s_barrier")
    for k in range(1, 4):
        for q in range(3):
            A(f"ds_read_b128 {v(O[k]+4*q,4)}, v{vT0} offset:{(k-1)*3072+q*1024}")
    for k in range(1, 4):
        A(f"s_waitcnt lgkmcnt({9-3*k})")
        for i in range(12):
            A(f"v_add_f32 v{O[0]+i}, v{O[0]+i}, v{O[k]+i}")
    A(f"v_mov_b32 v{vT0}, v{O[0]+8}")
    A(f"v_mov_b32 v{vT1}, v{O[0]+8}")
    for i in range(12):
        A(f"v_and_b32 v{O[1]+i}, 0x7fffffff, v{O[0]+i}")
        if i == 1:
            A(f"v_permlane32_swap_b32 v{vT0}, v{vT1}")
        if i == 3:
            A(f"v_rcp_f32 v{vT1}, v{vT1}")
    for i in range(12):
        A(f"v_mul_f32 v{O[0]+i}, v{O[0]+i}, v{vT1}")
    for i in range(6):
        A(f"v_cvt_pk_bf16_f32 v{P+i}, v{O[0]+2*i}, v{O[0]+2*i+1}")
    A(f"buffer_store_dwordx4 {v(P,4)}, v{vT3}, s[16:19], s{sT2} offen sc1")
    A(f"s_mov_b64 exec, s[{sLo}:{sLo+1}]")
    A(f"buffer_store_dwordx2 {v(P+4,2)}, v{vT3}, s[16:19], s{sT0} offen sc1")
    A("s_mov_b64 exec, -1")
    A(f"s_cmp_lg_u32 s{sPass}, 0")
    A("s_cbranch_scc1 k2_fin")
    A(f"v_max3_u32 v{vT2}, v{O[1]}, v{O[1]+1}, v{O[1]+2}")
    for i in range(3, 11, 2):
        A(f"v_max3_u32 v{vT2}, v{vT2}, v{O[1]+i}, v{O[1]+i+1}")
    A(f"v_max_u32 v{vT2}, v{vT2}, v{O[1]+11}")
    HI = (127 + 120) << 23
    if force_fallback: HI = 0
    A(f"v_cmp_lt_u32 vcc, 0x{HI:08x}, v{vT2}")
    A(f"v_mov_b32 v{vT1}, {LDS_FLAG}")
    A("s_nop 0")
    A(f"v_cndmask_b32 v{vT0}, 0, 1, vcc")
    A(f"ds_or_b32 v{vT1}, v{vT0}")
    A("s_waitcnt lgkmcnt(0)")
    A("s_barrier")
    A(f"ds_read_b32 v{vT0}, v{vT1}")
    A("s_waitcnt lgkmcnt(0)")
    A(f"v_readfirstlane_b32 s{sT0}, v{vT0}")
    A("s_nop 3")
    A(f"s_cmp_eq_u32 s{sT0}, 0")
    A("s_cbranch_scc1 k2_fin")
    A(f"s_mov_b32 s{sPass}, 1")
    A("s_waitcnt vmcnt(0)")
    for j in range(4):
        A(f"v_cndmask_b32 v{Q1[j]}, 0, v{Q1[j]}, s[{sLo}:{sLo+1}]")
        A(f"v_cndmask_b32 v{Q1[j]+1}, 0, v{Q1[j]+1}, s[{sLo}:{sLo+1}]")
        A(f"v_mov_b32 v{MX+j}, 0xff800000")
    A(f"s_mov_b32 s{sK0}, s{sK0b}")
    A(f"s_mov_b32 s{sK1}, s{sK1b}")
    A(f"s_mov_b32 s{sCnt}, 16")
    A.label("k2_fb_loop")
    loadK(0, sK0, sK1)
    advK()
    A("s_waitcnt vmcnt(0)")
    for j in range(4):
        A(f"v_mfma_f32_32x32x16_bf16 {v(O[j],16)}, {v(K0[0],4)}, {v(Q0[j],4)}, 0")
    for j in range(4):
        A(f"v_mfma_f32_32x32x8_bf16 {v(O[j],16)}, {v(K1[0],2)}, {v(Q1[j],2)}, {v(O[j],16)}")
    A("s_nop 7")
    A("s_nop 3")
    for j in range(4):
        maxred(MX + j, O[j], False)
    A(f"s_sub_u32 s{sCnt}, s{sCnt}, 1")
    A(f"s_cmp_lg_u32 s{sCnt}, 0")
    A("s_cbranch_scc1 k2_fb_loop")
    A(f"v_lshrrev_b32 v{vT1}, 2, v{vOffL}")
    A(f"s_lshl_b32 s{sT1}, s{sQg}, 12")
    A(f"s_add_u32 s{sT1}, s{sT1}, {LDS_MX}")
    A(f"s_lshl_b32 s{sT2}, s{sKs}, 10")
    for j in range(4):
        A(f"s_add_u32 s{sT0}, s{sKs}, {j}")
        A(f"s_and_b32 s{sT0}, s{sT0}, 3")
        A(f"s_lshl_b32 s{sT0}, s{sT0}, 8")
        A(f"s_add_u32 s{sT0}, s{sT0}, s{sT1}")
        A(f"v_add_u32 v{S[1]+8+j}, s{sT0}, v{vT1}")
        A(f"v_add_u32 v{vT0}, s{sT2}, v{S[1]+8+j}")
        A(f"ds_write_b32 v{vT0}, v{MX+j}")
    A("s_waitcnt lgkmcnt(0)")
    A("s_barrier")
    for j in range(4):
        for k in range(4):
            A(f"ds_read_b32 v{O[0]+4*k+j}, v{S[1]+8+j} offset:{k*1024}")
    A("s_waitcnt lgkmcnt(0)")
    for j in range(4):
        A(f"v_max3_f32 v{MX+j}, v{O[0]+j}, v{O[0]+4+j}, v{O[0]+8+j}")
        A(f"v_max_f32 v{MX+j}, v{MX+j}, v{O[0]+12+j}")
    finish_m(0.0)
    A(f"s_mov_b32 s{sK0}, s{sK0b}")
    A(f"s_mov_b32 s{sK1}, s{sK1b}")
    A(f"s_mov_b32 s{sV}, s{sVb}")
    A(f"s_add_u32 s{sV2}, s{sVb}, 20480")
    loadK(0, sK0, sK1)
    loadV(0)
    advK(); advV()
    loadK(1, sK0, sK1)
    A("s_branch k2_run")
    A.label("k2_fin")
    ST(10)
    ST.dump(4, sW, 12 if gemm else 8, slot=1)
    A.label("k2_exit")
    A("s_endpgm")

    if gemm:
        A.label("k2_gemm")
        G = Alloc(8, 168)
        ACC = [G(16, 4) for _ in range(5)]
        WR = [G(4, 4) for _ in range(GD)]
        HR = [G(4, 4) for _ in range(GH)]
        XR = [G(2, 4 if _ == 0 else 2) for _ in range(5)]
        vGA = G(); vGB = G(); vGX = G(); vWm = G()
        nv = max(nv, G.p)
        sG, sMt, sNt, sH, sWo, sX, sY = 23, 24, 25, 26, 27, 28, 29
        A(f"s_setprio {gp0}")
        A(f"s_sub_u32 s{sG}, s{sW}, 8")
        A(f"s_and_b32 s{sMt}, s2, 7")
        A(f"s_lshl_b32 s{sMt}, s{sMt}, 3")
        A(f"s_add_u32 s{sMt}, s{sMt}, s{sQgrp}")
        A(f"s_bfe_u32 s{sNt}, s2, 0x20003")
        A(f"v_and_b32 v{vT0}, 31, v{vT3}")
        A(f"v_lshrrev_b32 v{vT1}, 5, v{vT3}")
        A(f"s_lshl_b32 s{sT1}, s{sQgrp}, 3")
        A(f"s_lshl_b32 s{sT2}, s{sG}, 1")
        A(f"s_add_u32 s{sT1}, s{sT1}, s{sT2}")
        A(f"v_add_u32 v{vT1}, s{sT1}, v{vT1}")
        A(f"s_lshr_b32 s{sT1}, s{sT0}, 1")
        A(f"s_lshl_b32 s{sT1}, s{sT1}, 9")
        A(f"s_add_u32 s{sT1}, s{sT1}, {80*512}")
        A(f"v_mul_u32_u24 v{vWm}, 81920, v{vT1}" if False else f"v_mul_u32_u24 v{vWm}, 0x14000, v{vT1}")
        A(f"v_lshl_add_u32 v{vWm}, v{vT0}, 7, v{vWm}")
        A(f"v_add_u32 v{vWm}, s{sT1}, v{vWm}")
        A(f"v_subrev_u32 v{vT0}, 12, v{vT0}")
        A(f"v_mul_u32_u24 v{vT1}, 0xa000, v{vT1}")
        A(f"v_bfe_u32 v{vT2}, v{vT0}, 2, 2")
        A(f"v_mul_u32_u24 v{vT2}, 10240, v{vT2}")
        A(f"v_add_u32 v{vT1}, v{vT1}, v{vT2}")
        A(f"v_and_b32 v{vT2}, 3, v{vT0}")
        A(f"v_lshl_add_u32 v{vT1}, v{vT2}, 7, v{vT1}")
        A(f"s_mul_i32 s{sT1}, s{sHd}, 320")
        A(f"s_and_b32 s{sT1}, s{sT1}, 0xffffff80")
        A(f"s_add_u32 s{sT1}, s{sT1}, {WS_VT - WS_QK}")
        A(f"v_add_u32 v{vT1}, s{sT1}, v{vT1}")
        A(f"v_cmp_gt_i32 vcc, 0, v{vT0}")
        A(f"v_lshrrev_b32 v{vT0}, 5, v{vT3}")
        A(f"s_and_b32 s{sT1}, s{sG}, 1")
        A(f"s_lshl_b32 s{sT1}, s{sT1}, 9")
        A(f"v_cndmask_b32 v{vWm}, v{vT1}, v{vWm}, vcc")
        A(f"v_lshl_add_u32 v{vT0}, v{vT0}, 8, s{sT1}")
        A(f"v_bfe_u32 v{vT1}, v{vT3}, 4, 1")
        A(f"v_mul_u32_u24 v{vT1}, {54*1024}, v{vT1}")
        A(f"v_and_b32 v{vT2}, 15, v{vT3}")
        A(f"v_lshl_add_u32 v{vT1}, v{vT2}, 4, v{vT1}")
        A(f"v_add_u32 v{vGA}, v{vT0}, v{vT1}")
        A(f"s_lshl_b32 s{sT1}, s{sG}, 3")
        A(f"v_add_u32 v{vT1}, s{sT1}, v{vT3}")
        A(f"v_bfe_u32 v{vT2}, v{vT1}, 4, 1")
        A(f"v_lshl_add_u32 v{vT0}, v{vT2}, 10, v{vT0}")
        A(f"v_and_b32 v{vT1}, 15, v{vT1}")
        A(f"v_lshl_add_u32 v{vGB}, v{vT1}, 4, v{vT0}")
        A(f"s_lshr_b32 s{sT1}, s{sG}, 1")
        A(f"s_mul_i32 s{sH}, s{sMt}, {2*54*1024}")
        A(f"s_lshl_b32 s{sT2}, s{sT1}, 10")
        A(f"s_add_u32 s{sH}, s{sH}, s{sT2}")
        A(f"s_mul_i32 s{sWo}, s{sT1}, 40960")
        A(f"s_mul_i32 s{sT2}, s{sNt}, 10240")
        A(f"s_add_u32 s{sWo}, s{sWo}, s{sT2}")
        A("s_waitcnt lgkmcnt(0)")
        srd(A, 8, 4, 5, WS_QK, WS_VT - WS_QK + SZ_VT)
        if "nowarm" not in var:
            A(f"buffer_load_dword v{vGX}, v{vWm}, s[8:11], 0 offen")
        srd(A, 12, 4, 5, WS_H, SZ_H)
        srd(A, 16, 4, 5, WS_WF, SZ_WF)
        def ldW(n):
            i, j = divmod(n, 5)
            A(f"s_add_u32 s{sT0}, s{sWo}, {i*2*40960 + (j >> 1)*4096}")
            A(f"buffer_load_dwordx4 {v(WR[n % GD],4)}, v{vGB}, s[16:19], s{sT0} offen offset:{(j&1)*2048}")
        def ldH(i):
            A(f"s_add_u32 s{sT0}, s{sH}, {i*2048}")
            A(f"buffer_load_dwordx4 {v(HR[i % GH],4)}, v{vGA}, s[12:15], s{sT0} offen")
        seq = []
        NB = 5 * GU
        for n in range(-2 * NB, 2 * NB):
            seq.append(("M", n))
            seq.append(("W", n + GD))
            if n % 5 == 4: seq.append(("H", n // 5 + GH))
        i0 = seq.index(("M", 0))
        for t in seq[:i0]:
            if t[0] == "W" and t[1] >= 0: ldW(t[1])
            if t[0] == "H" and t[1] >= 0: ldH(t[1])
        for i in range(4):
            A(f"v_mov_b32 v{XR[0]+i}, 0")
        A(f"v_and_b32 v{vT0}, 31, v{vT3}")
        A(f"v_mul_u32_u24 v{vT0}, 1280, v{vT0}")
        A(f"v_lshrrev_b32 v{vT1}, 5, v{vT3}")
        A(f"v_lshl_add_u32 v{vWm}, v{vT1}, 3, v{vT0}")
        A(f"s_mul_i32 s{sX}, s{sMt}, {32*1280}")
        A(f"s_mul_i32 s{sT0}, s{sNt}, 320")
        A(f"s_add_u32 s{sX}, s{sX}, s{sT0}")
        A(f"s_lshl_b32 s{sT0}, s{sG}, 4")
        A(f"s_add_u32 s{sX}, s{sX}, s{sT0}")
        for j in range(5):
            A(f"v_mfma_f32_32x32x16_bf16 {v(ACC[j],16)}, {v(XR[0],4)}, {v(XR[0],4)}, 0")
        A(f"s_mov_b32 s{sCnt+2}, {27 // GU}")
        A(f"s_setprio {gprio if gp1 is None else gp1}")
        ST(9)
        A.raw(".p2align 6")
        A.label("k2_gloop")
        known = None
        for k, t in enumerate(seq[i0:]):
            if t[0] == "M":
                n = t[1]
                if n >= NB: break
                need = max(seq.index(("W", n)), seq.index(("H", n // 5)))
                cnt = sum(1 for u in seq[need + 1:i0 + k] if u[0] != "M")
                A(f"s_waitcnt vmcnt({cnt})")
                A(f"v_mfma_f32_32x32x16_bf16 {v(ACC[n%5],16)}, {v(WR[n%GD],4)}, {v(HR[(n//5)%GH],4)}, {v(ACC[n%5],16)}")
            elif t[0] == "W": ldW(t[1])
            else: ldH(t[1])
        if gp1 is not None: A(f"s_setprio {gprio}")
        A(f"s_add_u32 s{sWo}, s{sWo}, {GU*2*40960}")
        A(f"s_add_u32 s{sH}, s{sH}, {GU*2048}")
        A(f"s_sub_u32 s{sCnt+2}, s{sCnt+2}, 1")
        A(f"s_cmp_lg_u32 s{sCnt+2}, 0")
        A("s_cbranch_scc1 k2_gloop")
        ST(8)
        srd(A, 8, 6, 7, 0, 2048 * 1280)
        for j in range(5):
            A(f"buffer_load_dwordx2 {v(XR[j],2)}, v{vWm}, s[8:11], s{sX} offen offset:{j*64}")
        for q in range(1, 4):
            A(f"s_add_u32 s{sT0}, s{sG}, {q}")
            A(f"s_and_b32 s{sT0}, s{sT0}, 3")
            A(f"s_mul_i32 s{sT0}, s{sT0}, 15360")
            A(f"s_add_u32 s{sT0}, s{sT0}, {LDS_G + (q-1)*5120}")
            A(f"v_add_u32 v{vT0}, s{sT0}, v{vOffL}")
            for j in range(5):
                A(f"ds_write_b128 v{vT0}, {v(ACC[j]+4*q,4)} offset:{j*1024}")
        A(f"s_mul_i32 s{sT0}, s{sG}, 15360")
        A(f"s_add_u32 s{sT0}, s{sT0}, {LDS_G}")
        A(f"v_add_u32 v{vT0}, s{sT0}, v{vOffL}")
        A(f"v_bfe_u32 v{vT1}, v{vT3}, 4, 1")
        A(f"v_mul_u32_u24 v{vT1}, {40*512}, v{vT1}")
        A(f"v_lshrrev_b32 v{vT2}, 5, v{vT3}")
        A(f"v_lshl_add_u32 v{vT1}, v{vT2}, 7, v{vT1}")
        A(f"v_and_b32 v{vT2}, 15, v{vT3}")
        A(f"v_lshl_add_u32 v{vGA}, v{vT2}, 3, v{vT1}")
        A(f"s_mul_i32 s{sY}, s{sMt}, {2*40*512}")
        A(f"s_mul_i32 s{sT0}, s{sNt}, 5120")
        A(f"s_add_u32 s{sY}, s{sY}, s{sT0}")
        A(f"s_lshl_b32 s{sT0}, s{sG}, 8")
        A(f"s_add_u32 s{sY}, s{sY}, s{sT0}")
        srd(A, 12, 4, 5, WS_YB, SZ_YB)
        A("s_waitcnt vmcnt(0)")
        for j in range(5):
            for e in range(2):
                A(f"v_lshlrev_b32 v{WR[0]}, 16, v{XR[j]+e}")
                A(f"v_and_b32 v{WR[0]+1}, 0xffff0000, v{XR[j]+e}")
                A(f"v_add_f32 v{ACC[j]+2*e}, v{ACC[j]+2*e}, v{WR[0]}")
                A(f"v_add_f32 v{ACC[j]+2*e+1}, v{ACC[j]+2*e+1}, v{WR[0]+1}")
        A("s_waitcnt lgkmcnt(0)")
        ST(15)
        A("s_barrier")
        for q in range(1, 4):
            for j in range(5):
                A(f"ds_read_b128 {v(ACC[j]+4*q,4)}, v{vT0} offset:{(q-1)*5120+j*1024}")
        for q in range(1, 4):
            A(f"s_waitcnt lgkmcnt({15-5*q})")
            for j in range(5):
                for i in range(4):
                    A(f"v_add_f32 v{ACC[j]+i}, v{ACC[j]+i}, v{ACC[j]+4*q+i}")
        for j in range(5):
            A(f"v_cvt_pk_bf16_f32 v{XR[j]}, v{ACC[j]}, v{ACC[j]+1}")
            A(f"v_cvt_pk_bf16_f32 v{XR[j]+1}, v{ACC[j]+2}, v{ACC[j]+3}")
        for j in range(5):
            if j == 4: A(f"s_add_u32 s{sY}, s{sY}, 4096")
            A(f"buffer_store_dwordx2 {v(XR[j],2)}, v{vGA}, s[12:15], s{sY} offen offset:{(j&3)*1024} sc1")
        ST(10)
        ST.dump(4, sW, 12, slot=1)
        A("s_endpgm")
    assert nv <= 168, nv
    return kernel_wrap(name, A.text(), nv), lds, nv

if __name__ == "__main__":
    t, lds, nv = gen_k2()
    print(lds, nv, len(t.split("\n")))
```

```python
from asmlib import *
import struct
def f2u(x): return struct.unpack("<I", struct.pack("<f", x))[0]

WS_YB = WS_Y; SZ_YB = 128 * 40 * 512

def gen_k2(name="attn_kernel", OFF=96.0, force_fallback=False, ts=False, var="", gemm=True,
           GU=9, GD=9, GH=3, gprio=0, bprio=1, sw=1, swb=7, aprio=0, gp0=3, gp1=None, gp2=3):
    A = Asm()
    var = var.split(",")
    R = Alloc(1)
    vOffL = 0
    vOffV = R(); vT0 = R(); vT1 = R(); vT2 = R(); vT3 = R()
    vW = [R(), R(), R()]; vRd = R()
    vTS = R(); vTR = R()
    ST = Stamper(A, ts, vTS, vTR)
    O = [R(16, 4) for _ in range(4)]
    Q0 = [R(4, 4) for _ in range(4)]
    Q1 = [R(2) for _ in range(4)]
    K0 = [R(4, 4) for _ in range(2)]
    K1 = [R(2) for _ in range(2)]
    V = [R(8, 4) for _ in range(2)]
    S = [R(16, 4) for _ in range(2)]
    P = R(8, 4)
    nv = R.p
    MX = P + 4
    sW, sHd, sQgrp, sQg, sKs = 20, 21, 22, 23, 24
    sK0, sK1, sV, sCnt, sV2 = 25, 26, 27, 28, 29
    sLo, sVm = 30, 32
    sPass = 34
    sK0b, sK1b, sVb = 35, 36, 37
    sT0, sT1, sT2 = 38, 39, 40
    sQ0, sQ1, sOn = 41, 42, 44
    sC20, sC40, sC80 = 46, 47, 48
    LDS_G = 73728
    LDS_FLAG = LDS_G + 61440
    LDS_MX = LDS_FLAG + 64
    lds = LDS_MX + 12288
    sSt0, sSt1 = 49, 50

    A("s_cmp_ge_u32 s2, 256")
    A("s_cbranch_scc1 k2_exit")
    A("s_load_dwordx2 s[4:5], s[0:1], 64")
    A("s_load_dwordx2 s[6:7], s[0:1], 0")
    A(f"v_lshrrev_b32 v{vT0}, 6, v0")
    A(f"v_and_b32 v{vT3}, 63, v0")
    A(f"s_and_b32 s{sT0}, s2, 7")
    A(f"v_readfirstlane_b32 s{sW}, v{vT0}")
    ST(0)
    A(f"s_lshl_b32 s{sHd}, s{sT0}, 2")
    A(f"s_bfe_u32 s{sT0}, s2, 0x20003")
    A(f"s_add_u32 s{sHd}, s{sHd}, s{sT0}")
    A(f"s_lshr_b32 s{sQgrp}, s2, 5")
    A(f"v_lshlrev_b32 v{vOffL}, 4, v{vT3}")
    A(f"s_mul_i32 s{sT0}, s{sHd}, 5")
    if gemm:
        A(f"s_cmp_ge_u32 s{sW}, 8")
        A("s_cbranch_scc1 k2_gemm")
    A(f"s_and_b32 s{sQg}, s{sW}, 1")
    A(f"s_lshr_b32 s{sKs}, s{sW}, 1")
    if aprio: A(f"s_setprio {aprio}")
    A(f"s_cmp_lt_u32 s{sW}, 4")
    A("s_cbranch_scc1 k2_old")
    A(f"s_setprio {bprio}")
    A.label("k2_old")
    if "pts" in var: ST(2)
    A(f"s_mov_b32 s{sLo}, -1")
    A(f"s_mov_b32 s{sLo+1}, 0")
    A(f"s_mov_b32 s{sVm}, 0xfffff")
    A(f"s_mov_b32 s{sVm+1}, 0xfffff")
    A(f"s_mov_b32 s{sOn}, 0x100000")
    A(f"s_mov_b32 s{sOn+1}, 0x100000")
    A(f"s_mov_b32 s{sPass}, 0")
    A(f"s_movk_i32 s{sC20}, 20480")
    A(f"s_mov_b32 s{sC40}, 40960")
    A(f"s_mov_b32 s{sC80}, 81920")
    A(f"s_add_u32 s{sT1}, s{sT0}, 1")
    A(f"s_lshr_b32 s{sT1}, s{sT1}, 1")
    A(f"s_lshl_b32 s{sQ0}, s{sT1}, 9")
    A(f"s_lshr_b32 s{sT1}, s{sT0}, 1")
    A(f"s_lshl_b32 s{sT1}, s{sT1}, 9")
    A(f"s_and_b32 s{sT2}, s{sHd}, 1")
    A(f"s_cmp_eq_u32 s{sT2}, 0")
    A(f"s_cselect_b32 s{sT2}, 1024, 8")
    A(f"s_add_u32 s{sQ1}, s{sT1}, s{sT2}")
    A(f"s_add_u32 s{sK0b}, s{sQ0}, {80*512}")
    A(f"s_add_u32 s{sK1b}, s{sQ1}, {80*512}")
    A(f"s_mul_i32 s{sVb}, s{sHd}, 320")
    A(f"v_lshrrev_b32 v{vT0}, 5, v{vT3}")
    A(f"v_mul_u32_u24 v{vT0}, 10240, v{vT0}")
    A(f"v_and_b32 v{vT1}, 31, v{vT3}")
    A(f"v_lshl_add_u32 v{vOffV}, v{vT1}, 4, v{vT0}")
    A(f"v_mov_b32 v{vT0}, 0x3f803f80")
    for b in range(2):
        A(f"v_mov_b32 v{K1[b]}, v{vT0}")
        A(f"v_mov_b32 v{K1[b]+1}, 0x3f80")
    A(f"v_cndmask_b32 v{V[0]}, 0, v{vT0}, s[{sOn}:{sOn+1}]")
    A(f"v_mov_b32 v{Q1[0]}, 0")
    A(f"v_mov_b32 v{Q1[0]+1}, 0")
    for i in range(1, 16):
        A(f"v_mov_b32 v{V[0]+i}, v{V[0]}")
    A(f"s_lshl_b32 s{sT0}, s{sQgrp}, 3")
    A(f"s_lshl_b32 s{sT1}, s{sQg}, 2")
    A(f"s_add_u32 s{sT0}, s{sT0}, s{sT1}")
    A(f"s_add_u32 s{sT0}, s{sT0}, s{sKs}")
    A(f"s_mul_i32 s{sT0}, s{sT0}, 81920")
    A(f"s_add_u32 s{sQ0}, s{sQ0}, s{sT0}")
    A(f"s_add_u32 s{sQ1}, s{sQ1}, s{sT0}")
    A(f"s_mul_i32 s{sT0}, s{sKs}, {16*81920}")
    A(f"s_add_u32 s{sK0}, s{sK0b}, s{sT0}")
    A(f"s_add_u32 s{sK1}, s{sK1b}, s{sT0}")
    A(f"s_mul_i32 s{sT0}, s{sKs}, {16*40960}")
    A(f"s_add_u32 s{sVb}, s{sVb}, s{sT0}")
    A(f"s_mov_b32 s{sV}, s{sVb}")
    A(f"s_add_u32 s{sV2}, s{sVb}, 20480")
    if "pts" in var: ST(3)
    A("s_waitcnt lgkmcnt(0)")
    srd(A, 8, 4, 5, WS_QK, SZ_QK)
    srd(A, 12, 4, 5, WS_VT, SZ_VT)
    def loadK(b, s0, s1):
        A(f"buffer_load_dwordx4 {v(K0[b],4)}, v{vOffL}, s[8:11], s{s0} offen")
        A(f"s_mov_b64 exec, s[{sLo}:{sLo+1}]")
        A(f"buffer_load_dwordx2 {v(K1[b],2)}, v{vOffL}, s[8:11], s{s1} offen")
        A("s_mov_b64 exec, -1")
    def loadV(b):
        A(f"s_mov_b64 exec, s[{sVm}:{sVm+1}]")
        A(f"buffer_load_dwordx4 {v(V[b],4)}, v{vOffV}, s[12:15], s{sV} offen")
        A(f"buffer_load_dwordx4 {v(V[b]+4,4)}, v{vOffV}, s[12:15], s{sV2} offen")
        A("s_mov_b64 exec, -1")
    def advK():
        A(f"s_add_u32 s{sK0}, s{sK0}, 81920")
        A(f"s_add_u32 s{sK1}, s{sK1}, 81920")
    def advV():
        A(f"s_add_u32 s{sV}, s{sV}, 40960")
        A(f"s_add_u32 s{sV2}, s{sV2}, 40960")
    loadK(1, sK0b, sK1b)
    A(f"buffer_load_dwordx4 {v(Q0[0],4)}, v{vOffL}, s[8:11], s{sQ0} offen")
    A(f"s_mov_b64 exec, s[{sLo}:{sLo+1}]")
    A(f"buffer_load_dwordx2 {v(Q1[0],2)}, v{vOffL}, s[8:11], s{sQ1} offen")
    A("s_mov_b64 exec, -1")
    A(f"s_mov_b32 s{sK0b}, s{sK0}")
    A(f"s_mov_b32 s{sK1b}, s{sK1}")
    loadK(0, sK0, sK1)
    loadV(0)
    ST(12)
    advK(); advV()
    srd(A, 16, 4, 5, WS_OF, SZ_OF)
    A(f"v_mov_b32 v{vT0}, {LDS_FLAG}")
    A(f"v_mov_b32 v{vT1}, 0")
    A(f"ds_write2_b32 v{vT0}, v{vT1}, v{vT1} offset1:1")
    A(f"s_mul_i32 s{sT1}, s{sQg}, {4*9216}")
    for j in range(1, 4):
        A(f"s_add_u32 s{sT0}, s{sKs}, {j}")
        A(f"s_and_b32 s{sT0}, s{sT0}, 3")
        A(f"s_mul_i32 s{sT0}, s{sT0}, 9216")
        A(f"s_add_u32 s{sT0}, s{sT0}, s{sT1}")
        A(f"v_add_u32 v{vW[j-1]}, s{sT0}, v{vOffL}")
    A(f"s_mul_i32 s{sT0}, s{sKs}, 9216")
    A(f"s_add_u32 s{sT0}, s{sT0}, s{sT1}")
    A(f"v_add_u32 v{vRd}, s{sT0}, v{vOffL}")
    A(f"v_and_b32 v{vT1}, 0x100, v{vOffL}")
    A(f"v_mul_u32_u24 v{vT1}, 80, v{vT1}")
    A(f"v_lshrrev_b32 v{vT2}, 9, v{vOffL}")
    A(f"v_lshl_add_u32 v{vT1}, v{vT2}, 8, v{vT1}")
    A(f"v_and_b32 v{vT2}, 0xf0, v{vOffL}")
    A(f"v_add_u32 v{vT3}, v{vT1}, v{vT2}")
    A(f"s_lshl_b32 s{sT0}, s{sQgrp}, 3")
    A(f"s_lshl_b32 s{sT1}, s{sQg}, 2")
    A(f"s_add_u32 s{sT0}, s{sT0}, s{sT1}")
    A(f"s_add_u32 s{sT0}, s{sT0}, s{sKs}")
    A(f"s_mul_i32 s{sT0}, s{sT0}, 40960")
    A(f"s_lshl_b32 s{sSt0}, s{sHd}, 9")
    A(f"s_add_u32 s{sSt0}, s{sSt0}, s{sT0}")
    A(f"s_lshr_b32 s{sT1}, s{sHd}, 3")
    A(f"s_lshl_b32 s{sT1}, s{sT1}, 10")
    A(f"s_add_u32 s{sT0}, s{sT0}, s{sT1}")
    A(f"s_and_b32 s{sT1}, s{sHd}, 3")
    A(f"s_lshl_b32 s{sT1}, s{sT1}, 8")
    A(f"s_add_u32 s{sT0}, s{sT0}, s{sT1}")
    A(f"s_and_b32 s{sT1}, s{sHd}, 4")
    A(f"s_lshl_b32 s{sT1}, s{sT1}, 1")
    A(f"s_add_u32 s{sT0}, s{sT0}, s{sT1}")
    A(f"s_add_u32 s{sSt1}, s{sT0}, {16*1024}")
    QA = S[1] + 8
    A(f"s_mul_i32 s{sT1}, s{sQg}, {4*1536}")
    A(f"s_add_u32 s{sT1}, s{sT1}, {LDS_MX}")
    A(f"v_lshrrev_b32 v{vT2}, 1, v{vOffL}")
    for j in range(4):
        A(f"s_add_u32 s{sT0}, s{sKs}, {j}")
        A(f"s_and_b32 s{sT0}, s{sT0}, 3")
        A(f"s_mul_i32 s{sT0}, s{sT0}, 1536")
        A(f"s_add_u32 s{sT0}, s{sT0}, s{sT1}")
        A(f"v_add_u32 v{QA+2*j}, s{sT0}, v{vOffL}")
        A(f"v_add_u32 v{QA+2*j+1}, s{sT0}, v{vT2}")
    for i in range(4):
        A(f"v_mov_b32 v{P+i}, 0")
    A("s_waitcnt vmcnt(4)")
    A(f"v_mfma_f32_32x32x16_bf16 {v(O[0],16)}, {v(K0[1],4)}, {v(Q0[0],4)}, 0")
    A(f"v_mfma_f32_32x32x8_bf16 {v(O[0],16)}, {v(K1[1],2)}, {v(Q1[0],2)}, {v(O[0],16)}")
    ST(13)
    A(f"ds_write_b128 v{QA}, {v(Q0[0],4)}")
    for j in range(1, 4):
        A(f"v_mfma_f32_32x32x16_bf16 {v(O[j],16)}, {v(P,4)}, {v(P,4)}, 0")
    loadK(1, sK0, sK1)
    A("s_nop 3")
    def maxred(dst, src, init):
        if init:
            A(f"v_max3_f32 v{dst}, v{src}, v{src+1}, v{src+2}")
            A(f"v_max_f32 v{dst}, v{dst}, v{src+3}")
            st = 4
        else:
            st = 0
        for i in range(st, 16, 2):
            A(f"v_max3_f32 v{dst}, v{dst}, v{src+i}, v{src+i+1}")
    def finish_m(off, JS=range(4)):
        T = S[1]
        for j in JS: A(f"v_mov_b32 v{T+j}, v{MX+j}")
        A("s_nop 1")
        for j in JS: A(f"v_permlane32_swap_b32 v{MX+j}, v{T+j}")
        if len(JS) == 1: A("s_nop 0")
        for j in JS: A(f"v_max_f32 v{MX+j}, v{MX+j}, v{T+j}")
        for j in JS: A(f"v_sub_f32 v{MX+j}, 0x{f2u(-off):08x}, v{MX+j}")
        for j in JS: A(f"v_and_b32 v{T+j}, 0xffff0000, v{MX+j}")
        for j in JS: A(f"v_sub_f32 v{MX+j}, v{MX+j}, v{T+j}")
        for j in JS: A(f"v_and_b32 v{T+4+j}, 0xffff0000, v{MX+j}")
        for j in JS: A(f"v_sub_f32 v{MX+j}, v{MX+j}, v{T+4+j}")
        for j in JS: A(f"v_alignbit_b32 v{T+j}, v{T+4+j}, v{T+j}, 16" if False else f"v_lshrrev_b32 v{T+j}, 16, v{T+j}")
        for j in JS: A(f"v_or_b32 v{T+j}, v{T+j}, v{T+4+j}")
        for j in JS: A(f"v_lshrrev_b32 v{MX+j}, 16, v{MX+j}")
        for j in JS: A(f"v_cndmask_b32 v{Q1[j]}, v{T+j}, v{Q1[j]}, s[{sLo}:{sLo+1}]")
        for j in JS: A(f"v_cndmask_b32 v{Q1[j]+1}, v{MX+j}, v{Q1[j]+1}, s[{sLo}:{sLo+1}]")
    maxred(MX, O[0], True)
    finish_m(OFF, [0])
    A(f"ds_write_b64 v{QA+1}, {v(Q1[0],2)} offset:1024")
    for i in range(4, 8):
        A(f"v_mov_b32 v{P+i}, 0")
    advK()
    A("s_waitcnt vmcnt(4)")
    A(f"v_mfma_f32_32x32x16_bf16 {v(S[0],16)}, {v(K0[0],4)}, {v(Q0[0],4)}, 0")
    A(f"v_mfma_f32_32x32x8_bf16 {v(S[0],16)}, {v(K1[0],2)}, {v(Q1[0],2)}, {v(S[0],16)}")
    A(f"v_mfma_f32_32x32x16_bf16 {v(O[0],16)}, {v(P,4)}, {v(P,4)}, 0")
    A("s_waitcnt lgkmcnt(0)")
    ST(14)
    A("s_barrier")
    for j in range(1, 4):
        A(f"ds_read_b128 {v(Q0[j],4)}, v{QA+2*j}")
        A(f"ds_read_b64 {v(Q1[j],2)}, v{QA+2*j+1} offset:1024")
    A("s_waitcnt lgkmcnt(0)")
    A("s_branch k2_go")
    A.label("k2_run")
    for i in range(8):
        A(f"v_mov_b32 v{P+i}, 0")
    advK()
    A("s_waitcnt vmcnt(4)")
    A(f"v_mfma_f32_32x32x16_bf16 {v(S[0],16)}, {v(K0[0],4)}, {v(Q0[0],4)}, 0")
    A(f"v_mfma_f32_32x32x8_bf16 {v(S[0],16)}, {v(K1[0],2)}, {v(Q1[0],2)}, {v(S[0],16)}")
    for j in range(4):
        A(f"v_mfma_f32_32x32x16_bf16 {v(O[j],16)}, {v(P,4)}, {v(P,4)}, 0")
    A("s_nop 6")
    A.label("k2_go")
    A(f"s_mov_b32 s{sCnt}, 8")
    ST(9)
    A.raw(".p2align 6")
    A.label("k2_loop")
    L0 = len(A.lines)
    def cvt(p, r):
        A(f"v_cvt_pk_bf16_f32 v{P+p}, v{r}, v{r+1}")
    def exps(r0):
        for i in range(4):
            A(f"v_exp_f32 v{r0+i}, v{r0+i}")
    for b in range(2):
        for j in range(4):
            n = 4 * b + j
            c = S[n & 1]; nx = S[(n & 1) ^ 1]
            kb, jn = (b, j + 1) if j < 3 else (b ^ 1, 0)
            vb, jp = (b, j - 1) if j > 0 else (b ^ 1, 3)
            A(f"v_mfma_f32_32x32x16_bf16 {v(nx,16)}, {v(K0[kb],4)}, {v(Q0[jn],4)}, 0")
            exps(c)
            A(f"v_mfma_f32_32x32x16_bf16 {v(O[jp],16)}, {v(V[vb]+4,4)}, {v(P+4,4)}, {v(O[jp],16)}")
            cvt(0, c); cvt(1, c + 2); exps(c + 4)
            A(f"v_mfma_f32_32x32x8_bf16 {v(nx,16)}, {v(K1[kb],2)}, {v(Q1[jn],2)}, {v(nx,16)}")
            if j == 0 and "nold" not in var:
                A(f"s_mov_b64 exec, s[{sVm}:{sVm+1}]")
                A(f"s_add_u32 s{sV2}, s{sV}, s{sC20}")
                A(f"buffer_load_dwordx4 {v(V[b^1],4)}, v{vOffV}, s[12:15], s{sV} offen")
                A(f"buffer_load_dwordx4 {v(V[b^1]+4,4)}, v{vOffV}, s[12:15], s{sV2} offen")
                A("s_mov_b64 exec, -1")
                A(f"s_add_u32 s{sV}, s{sV}, s{sC40}")
            if j == 3 and "nold" not in var:
                A(f"buffer_load_dwordx4 {v(K0[b],4)}, v{vOffL}, s[8:11], s{sK0} offen")
                A(f"s_mov_b64 exec, s[{sLo}:{sLo+1}]")
                A(f"s_add_u32 s{sK0}, s{sK0}, s{sC80}")
                A(f"buffer_load_dwordx2 {v(K1[b],2)}, v{vOffL}, s[8:11], s{sK1} offen")
                A("s_mov_b64 exec, -1")
                A(f"s_add_u32 s{sK1}, s{sK1}, s{sC80}")
            cvt(2, c + 4); cvt(3, c + 6); exps(c + 8)
            if j == 0 and "nold" not in var:
                A("s_waitcnt vmcnt(4)")
            A(f"v_mfma_f32_32x32x16_bf16 {v(O[j],16)}, {v(V[b],4)}, {v(P,4)}, {v(O[j],16)}")
            exps(c + 12)
            if j == 2 and "nold" not in var:
                A("s_waitcnt vmcnt(2)")
            cvt(4, c + 8); cvt(5, c + 10); cvt(6, c + 12); cvt(7, c + 14)
            if n == swb and swb != 7:
                A(f"s_cmp_lg_u32 s{sCnt}, {sw}")
                A("s_cbranch_scc1 k2_nosw")
                A(f"s_setprio {aprio}")
                A("s_nop 0")
                A.label("k2_nosw")
    if "noadv" in var: A.lines[L0:] = [l for l in A.lines[L0:] if not re.search(r"s_add_u32 s(\d+), s\1,", l)]
    if "noexec" in var: A.lines[L0:] = [l for l in A.lines[L0:] if "exec" not in l]
    if "nowait" in var: A.lines[L0:] = [l for l in A.lines[L0:] if "waitcnt" not in l]
    if "nok1" in var: A.lines[L0:] = [l for l in A.lines[L0:] if "dwordx2" not in l]
    if "noal" not in var:
        isizes(A.lines[L0:]); A.lines[L0:] = align8(A.lines[L0:])
    if ts: A(f"s_mov_b32 m0, s{sCnt}")
    if "pts" not in var: ST("m0")
    A(f"s_sub_u32 s{sCnt}, s{sCnt}, 1")
    if swb == 7:
        A(f"s_cmp_lg_u32 s{sCnt}, {sw}")
        A("s_cbranch_scc1 k2_nosw")
        A(f"s_setprio {aprio}")
        A.label("k2_nosw")
    A(f"s_cmp_lg_u32 s{sCnt}, 0")
    A("s_cbranch_scc1 k2_loop")
    A(f"v_mfma_f32_32x32x16_bf16 {v(O[3],16)}, {v(V[1]+4,4)}, {v(P+4,4)}, {v(O[3],16)}")
    for j in range(1, 4):
        if j == 3: A("s_nop 5")
        for q in range(3):
            A(f"ds_write_b128 v{vW[j-1]}, {v(O[j]+4*q,4)} offset:{(j-1)*3072+q*1024}")
    A("s_waitcnt lgkmcnt(0)")
    ST(15)
    A("s_barrier")
    for k in range(1, 4):
        for q in range(3):
            A(f"ds_read_b128 {v(O[k]+4*q,4)}, v{vRd} offset:{(k-1)*3072+q*1024}")
    for k in range(1, 4):
        A(f"s_waitcnt lgkmcnt({9-3*k})")
        for i in range(12):
            A(f"v_add_f32 v{O[0]+i}, v{O[0]+i}, v{O[k]+i}")
    A(f"v_mov_b32 v{vT0}, v{O[0]+8}")
    A(f"v_mov_b32 v{vT1}, v{O[0]+8}")
    for i in range(12):
        A(f"v_and_b32 v{O[1]+i}, 0x7fffffff, v{O[0]+i}")
        if i == 1:
            A(f"v_permlane32_swap_b32 v{vT0}, v{vT1}")
        if i == 3:
            A(f"v_rcp_f32 v{vT1}, v{vT1}")
    for i in range(12):
        A(f"v_mul_f32 v{O[0]+i}, v{O[0]+i}, v{vT1}")
    for i in range(6):
        A(f"v_cvt_pk_bf16_f32 v{P+i}, v{O[0]+2*i}, v{O[0]+2*i+1}")
    A(f"buffer_store_dwordx4 {v(P,4)}, v{vT3}, s[16:19], s{sSt0} offen sc1")
    A(f"s_mov_b64 exec, s[{sLo}:{sLo+1}]")
    A(f"buffer_store_dwordx2 {v(P+4,2)}, v{vT3}, s[16:19], s{sSt1} offen sc1")
    A("s_mov_b64 exec, -1")
    A(f"s_cmp_lg_u32 s{sPass}, 0")
    A("s_cbranch_scc1 k2_fin")
    A(f"v_max3_u32 v{vT2}, v{O[1]}, v{O[1]+1}, v{O[1]+2}")
    for i in range(3, 11, 2):
        A(f"v_max3_u32 v{vT2}, v{vT2}, v{O[1]+i}, v{O[1]+i+1}")
    A(f"v_max_u32 v{vT2}, v{vT2}, v{O[1]+11}")
    HI = (127 + 120) << 23
    if force_fallback: HI = 0
    A(f"v_cmp_lt_u32 vcc, 0x{HI:08x}, v{vT2}")
    A(f"v_mov_b32 v{vT1}, {LDS_FLAG}")
    A(f"v_mov_b32 v{vT0}, 1")
    A("s_nop 3")
    A("s_cbranch_vccz k2_okw")
    A(f"ds_write_b32 v{vT1}, v{vT0}")
    A("s_waitcnt lgkmcnt(0)")
    A.label("k2_okw")
    A("s_barrier")
    A(f"ds_read_b32 v{vT0}, v{vT1}")
    A("s_waitcnt lgkmcnt(0)")
    A(f"v_readfirstlane_b32 s{sT0}, v{vT0}")
    A("s_nop 3")
    A(f"s_cmp_eq_u32 s{sT0}, 0")
    A("s_cbranch_scc1 k2_fin")
    A(f"s_mov_b32 s{sPass}, 1")
    A("s_waitcnt vmcnt(0)")
    for j in range(4):
        A(f"v_cndmask_b32 v{Q1[j]}, 0, v{Q1[j]}, s[{sLo}:{sLo+1}]")
        A(f"v_cndmask_b32 v{Q1[j]+1}, 0, v{Q1[j]+1}, s[{sLo}:{sLo+1}]")
        A(f"v_mov_b32 v{MX+j}, 0xff800000")
    A(f"s_mov_b32 s{sK0}, s{sK0b}")
    A(f"s_mov_b32 s{sK1}, s{sK1b}")
    A(f"s_mov_b32 s{sCnt}, 16")
    A.label("k2_fb_loop")
    loadK(0, sK0, sK1)
    advK()
    A("s_waitcnt vmcnt(0)")
    for j in range(4):
        A(f"v_mfma_f32_32x32x16_bf16 {v(O[j],16)}, {v(K0[0],4)}, {v(Q0[j],4)}, 0")
    for j in range(4):
        A(f"v_mfma_f32_32x32x8_bf16 {v(O[j],16)}, {v(K1[0],2)}, {v(Q1[j],2)}, {v(O[j],16)}")
    A("s_nop 7")
    A("s_nop 3")
    for j in range(4):
        maxred(MX + j, O[j], False)
    A(f"s_sub_u32 s{sCnt}, s{sCnt}, 1")
    A(f"s_cmp_lg_u32 s{sCnt}, 0")
    A("s_cbranch_scc1 k2_fb_loop")
    A(f"v_lshrrev_b32 v{vT1}, 2, v{vOffL}")
    A(f"s_lshl_b32 s{sT1}, s{sQg}, 12")
    A(f"s_add_u32 s{sT1}, s{sT1}, {LDS_MX}")
    A(f"s_lshl_b32 s{sT2}, s{sKs}, 10")
    for j in range(4):
        A(f"s_add_u32 s{sT0}, s{sKs}, {j}")
        A(f"s_and_b32 s{sT0}, s{sT0}, 3")
        A(f"s_lshl_b32 s{sT0}, s{sT0}, 8")
        A(f"s_add_u32 s{sT0}, s{sT0}, s{sT1}")
        A(f"v_add_u32 v{S[1]+8+j}, s{sT0}, v{vT1}")
        A(f"v_add_u32 v{vT0}, s{sT2}, v{S[1]+8+j}")
        A(f"ds_write_b32 v{vT0}, v{MX+j}")
    A("s_waitcnt lgkmcnt(0)")
    A("s_barrier")
    for j in range(4):
        for k in range(4):
            A(f"ds_read_b32 v{O[0]+4*k+j}, v{S[1]+8+j} offset:{k*1024}")
    A("s_waitcnt lgkmcnt(0)")
    for j in range(4):
        A(f"v_max3_f32 v{MX+j}, v{O[0]+j}, v{O[0]+4+j}, v{O[0]+8+j}")
        A(f"v_max_f32 v{MX+j}, v{MX+j}, v{O[0]+12+j}")
    finish_m(0.0)
    A(f"s_mov_b32 s{sK0}, s{sK0b}")
    A(f"s_mov_b32 s{sK1}, s{sK1b}")
    A(f"s_mov_b32 s{sV}, s{sVb}")
    A(f"s_add_u32 s{sV2}, s{sVb}, 20480")
    loadK(0, sK0, sK1)
    loadV(0)
    advK(); advV()
    loadK(1, sK0, sK1)
    A("s_branch k2_run")
    A.label("k2_fin")
    ST(10)
    ST.dump(4, sW, 12 if gemm else 8, slot=1)
    A.label("k2_exit")
    A("s_endpgm")

    if gemm:
        A.label("k2_gemm")
        G = Alloc(12, 168)
        ACC = [G(16, 4) for _ in range(5)]
        WR = [G(4, 4) for _ in range(GD)]
        HR = [G(4, 4) for _ in range(GH)]
        XR = [G(2, 4 if _ == 0 else 2) for _ in range(5)]
        vGA = G(); vGB = G(); vWm = G()
        nv = max(nv, G.p)
        sG, sMt, sNt, sH, sWo, sX, sY = 23, 24, 25, 26, 27, 28, 29
        A(f"s_setprio {gp0}")
        A(f"s_sub_u32 s{sG}, s{sW}, 8")
        A(f"s_and_b32 s{sMt}, s2, 7")
        A(f"s_lshl_b32 s{sMt}, s{sMt}, 3")
        A(f"s_add_u32 s{sMt}, s{sMt}, s{sQgrp}")
        A(f"s_bfe_u32 s{sNt}, s2, 0x20003")
        A(f"v_lshrrev_b32 v{vT0}, 5, v{vT3}")
        A(f"s_and_b32 s{sT1}, s{sG}, 1")
        A(f"s_lshl_b32 s{sT1}, s{sT1}, 9")
        A(f"v_lshl_add_u32 v{vT0}, v{vT0}, 8, s{sT1}")
        A(f"v_bfe_u32 v{vT1}, v{vT3}, 4, 1")
        A(f"v_mul_u32_u24 v{vT1}, {54*1024}, v{vT1}")
        A(f"v_and_b32 v{vT2}, 15, v{vT3}")
        A(f"v_lshl_add_u32 v{vT1}, v{vT2}, 4, v{vT1}")
        A(f"v_add_u32 v{vGA}, v{vT0}, v{vT1}")
        A(f"s_lshl_b32 s{sT1}, s{sG}, 3")
        A(f"v_add_u32 v{vT1}, s{sT1}, v{vT3}")
        A(f"v_bfe_u32 v{vT2}, v{vT1}, 4, 1")
        A(f"v_lshl_add_u32 v{vT0}, v{vT2}, 10, v{vT0}")
        A(f"v_and_b32 v{vT1}, 15, v{vT1}")
        A(f"v_lshl_add_u32 v{vGB}, v{vT1}, 4, v{vT0}")
        A(f"s_lshr_b32 s{sT1}, s{sG}, 1")
        A(f"s_mul_i32 s{sH}, s{sMt}, {2*54*1024}")
        A(f"s_lshl_b32 s{sT2}, s{sT1}, 10")
        A(f"s_add_u32 s{sH}, s{sH}, s{sT2}")
        A(f"s_mul_i32 s{sWo}, s{sT1}, 40960")
        A(f"s_mul_i32 s{sT2}, s{sNt}, 10240")
        A(f"s_add_u32 s{sWo}, s{sWo}, s{sT2}")
        A("s_waitcnt lgkmcnt(0)")
        srd(A, 12, 4, 5, WS_H, SZ_H)
        srd(A, 16, 4, 5, WS_WF, SZ_WF)
        def ldW(n):
            i, j = divmod(n, 5)
            A(f"s_add_u32 s{sT0}, s{sWo}, {i*2*40960 + (j >> 1)*4096}")
            A(f"buffer_load_dwordx4 {v(WR[n % GD],4)}, v{vGB}, s[16:19], s{sT0} offen offset:{(j&1)*2048}")
        def ldH(i):
            A(f"s_add_u32 s{sT0}, s{sH}, {i*2048}")
            A(f"buffer_load_dwordx4 {v(HR[i % GH],4)}, v{vGA}, s[12:15], s{sT0} offen")
        seq = []
        NB = 5 * GU
        for n in range(-2 * NB, 2 * NB):
            seq.append(("M", n))
            seq.append(("W", n + GD))
            if n % 5 == 4: seq.append(("H", n // 5 + GH))
        i0 = seq.index(("M", 0))
        for i in range(4):
            A(f"v_mov_b32 v{XR[0]+i}, 0")
        A(f"v_and_b32 v{vT0}, 31, v{vT3}")
        A(f"v_mul_u32_u24 v{vT0}, 1280, v{vT0}")
        A(f"v_lshrrev_b32 v{vT1}, 5, v{vT3}")
        A(f"v_lshl_add_u32 v{vWm}, v{vT1}, 3, v{vT0}")
        A(f"s_mul_i32 s{sX}, s{sMt}, {32*1280}")
        A(f"s_mul_i32 s{sT0}, s{sNt}, 320")
        A(f"s_add_u32 s{sX}, s{sX}, s{sT0}")
        A(f"s_lshl_b32 s{sT0}, s{sG}, 4")
        A(f"s_add_u32 s{sX}, s{sX}, s{sT0}")
        for j in range(5):
            A(f"v_mfma_f32_32x32x16_bf16 {v(ACC[j],16)}, {v(XR[0],4)}, {v(XR[0],4)}, 0")
        A(f"s_mov_b32 s{sCnt+2}, {27 // GU}")
        A(f"s_setprio {gprio if gp1 is None else gp1}")
        A("s_barrier")
        for t in seq[:i0]:
            if t[0] == "W" and t[1] >= 0: ldW(t[1])
            if t[0] == "H" and t[1] >= 0: ldH(t[1])
        ST(9)
        A.raw(".p2align 6")
        A.label("k2_gloop")
        known = None
        for k, t in enumerate(seq[i0:]):
            if t[0] == "M":
                n = t[1]
                if n >= NB: break
                need = max(seq.index(("W", n)), seq.index(("H", n // 5)))
                cnt = sum(1 for u in seq[need + 1:i0 + k] if u[0] != "M")
                A(f"s_waitcnt vmcnt({cnt})")
                A(f"v_mfma_f32_32x32x16_bf16 {v(ACC[n%5],16)}, {v(WR[n%GD],4)}, {v(HR[(n//5)%GH],4)}, {v(ACC[n%5],16)}")
            elif t[0] == "W": ldW(t[1])
            else: ldH(t[1])
        if gp1 is not None: A(f"s_setprio {gprio}")
        A(f"s_add_u32 s{sWo}, s{sWo}, {GU*2*40960}")
        A(f"s_add_u32 s{sH}, s{sH}, {GU*2048}")
        A(f"s_sub_u32 s{sCnt+2}, s{sCnt+2}, 1")
        A(f"s_cmp_lg_u32 s{sCnt+2}, 0")
        A("s_cbranch_scc1 k2_gloop")
        ST(8)
        A(f"s_setprio {gp2}")
        srd(A, 8, 6, 7, 0, 2048 * 1280)
        for j in range(5):
            A(f"buffer_load_dwordx2 {v(XR[j],2)}, v{vWm}, s[8:11], s{sX} offen offset:{j*64}")
        for q in range(1, 4):
            A(f"s_add_u32 s{sT0}, s{sG}, {q}")
            A(f"s_and_b32 s{sT0}, s{sT0}, 3")
            A(f"s_mul_i32 s{sT0}, s{sT0}, 15360")
            A(f"s_add_u32 s{sT0}, s{sT0}, {LDS_G + (q-1)*5120}")
            A(f"v_add_u32 v{vT0}, s{sT0}, v{vOffL}")
            for j in range(5):
                A(f"ds_write_b128 v{vT0}, {v(ACC[j]+4*q,4)} offset:{j*1024}")
        A(f"s_mul_i32 s{sT0}, s{sG}, 15360")
        A(f"s_add_u32 s{sT0}, s{sT0}, {LDS_G}")
        A(f"v_add_u32 v{vT0}, s{sT0}, v{vOffL}")
        A(f"v_bfe_u32 v{vT1}, v{vT3}, 4, 1")
        A(f"v_mul_u32_u24 v{vT1}, {40*512}, v{vT1}")
        A(f"v_lshrrev_b32 v{vT2}, 5, v{vT3}")
        A(f"v_lshl_add_u32 v{vT1}, v{vT2}, 7, v{vT1}")
        A(f"v_and_b32 v{vT2}, 15, v{vT3}")
        A(f"v_lshl_add_u32 v{vGA}, v{vT2}, 3, v{vT1}")
        A(f"s_mul_i32 s{sY}, s{sMt}, {2*40*512}")
        A(f"s_mul_i32 s{sT0}, s{sNt}, 5120")
        A(f"s_add_u32 s{sY}, s{sY}, s{sT0}")
        A(f"s_lshl_b32 s{sT0}, s{sG}, 8")
        A(f"s_add_u32 s{sY}, s{sY}, s{sT0}")
        srd(A, 12, 4, 5, WS_YB, SZ_YB)
        A("s_waitcnt vmcnt(0)")
        for j in range(5):
            for e in range(2):
                A(f"v_lshlrev_b32 v{WR[0]}, 16, v{XR[j]+e}")
                A(f"v_and_b32 v{WR[0]+1}, 0xffff0000, v{XR[j]+e}")
                A(f"v_add_f32 v{ACC[j]+2*e}, v{ACC[j]+2*e}, v{WR[0]}")
                A(f"v_add_f32 v{ACC[j]+2*e+1}, v{ACC[j]+2*e+1}, v{WR[0]+1}")
        A("s_waitcnt lgkmcnt(0)")
        ST(15)
        if "gbar" in var:
            A("s_barrier")
        else:
            A(f"v_mov_b32 v{vT1}, {LDS_FLAG + 4}")
            A(f"v_mov_b32 v{vT2}, 1")
            A("s_mov_b64 exec, 1")
            A(f"ds_add_u32 v{vT1}, v{vT2}")
            A("s_mov_b64 exec, -1")
            A.label("k2_gspin")
            A(f"ds_read_b32 v{vT2}, v{vT1}")
            A("s_waitcnt lgkmcnt(0)")
            A(f"v_readfirstlane_b32 s{sT0}, v{vT2}")
            A("s_nop 3")
            A(f"s_cmp_lt_u32 s{sT0}, 4")
            A("s_cbranch_scc1 k2_gspin")
        for q in range(1, 4):
            for j in range(5):
                A(f"ds_read_b128 {v(ACC[j]+4*q,4)}, v{vT0} offset:{(q-1)*5120+j*1024}")
        for q in range(1, 4):
            A(f"s_waitcnt lgkmcnt({15-5*q})")
            for j in range(5):
                for i in range(4):
                    A(f"v_add_f32 v{ACC[j]+i}, v{ACC[j]+i}, v{ACC[j]+4*q+i}")
        for j in range(5):
            A(f"v_cvt_pk_bf16_f32 v{XR[j]}, v{ACC[j]}, v{ACC[j]+1}")
            A(f"v_cvt_pk_bf16_f32 v{XR[j]+1}, v{ACC[j]+2}, v{ACC[j]+3}")
        for j in range(5):
            if j == 4: A(f"s_add_u32 s{sY}, s{sY}, 4096")
            A(f"buffer_store_dwordx2 {v(XR[j],2)}, v{vGA}, s[12:15], s{sY} offen offset:{(j&3)*1024} sc1")
        ST(10)
        ST.dump(4, sW, 12, slot=1)
        A("s_endpgm")
    assert nv <= 168, nv
    return kernel_wrap(name, A.text(), nv), lds, nv

if __name__ == "__main__":
    t, lds, nv = gen_k2()
    print(lds, nv, len(t.split("\n")))
```

```python
from asmlib import *
from k2b import WS_YB, SZ_YB

def gen_k3(name="outp_kernel", ts=False, var=""):
    A = Asm()
    R = Alloc(1)
    vTS = R(); vTR = R()
    ST = Stamper(A, ts, vTS, vTR)
    vT = [R() for _ in range(2)]
    vO = [R() for _ in range(4)]
    vB = [R(), R()]
    vX = R(); vY = R()
    XR = [R(2) for _ in range(5)]
    FA = [[R(4, 4) for _ in range(4)] for _ in range(5)]
    FB = [[R(4, 4) for _ in range(5)] for _ in range(5)]
    nv = R.p
    assert nv <= 256
    ACC = [[4 * (5 * i + j) for j in range(5)] for i in range(4)]
    sW, sMt, sNt, sT0, sT1, sT2, sA, sB, sXo, sYo = 32, 33, 34, 35, 36, 37, 38, 39, 40, 41
    A("s_cmp_ge_u32 s2, 256")
    A("s_cbranch_scc1 k3_exit")
    A("s_load_dwordx2 s[8:9], s[0:1], 64")
    A("s_load_dwordx2 s[6:7], s[0:1], 48")
    A(f"v_lshrrev_b32 v{vT[0]}, 6, v0")
    A(f"v_and_b32 v0, 63, v0")
    A(f"s_and_b32 s{sT0}, s2, 7")
    A(f"v_readfirstlane_b32 s{sW}, v{vT[0]}")
    ST(0)
    A(f"s_lshr_b32 s{sT1}, s2, 3")
    A(f"s_lshr_b32 s{sMt}, s{sT0}, 1")
    A(f"s_lshl_b32 s{sMt}, s{sMt}, 3")
    A(f"s_and_b32 s{sT2}, s{sT1}, 7")
    A(f"s_add_u32 s{sMt}, s{sMt}, s{sT2}")
    A(f"s_and_b32 s{sNt}, s{sT0}, 1")
    A(f"s_lshl_b32 s{sNt}, s{sNt}, 2")
    A(f"s_lshr_b32 s{sT2}, s{sT1}, 3")
    A(f"s_add_u32 s{sNt}, s{sNt}, s{sT2}")
    A(f"v_lshlrev_b32 v{vB[0]}, 4, v0")
    A(f"v_add_u32 v{vB[1]}, 4096, v{vB[0]}")
    for i in range(4):
        A(f"s_add_u32 s{sT0}, s{sW}, {i}")
        A(f"s_and_b32 s{sT0}, s{sT0}, 3")
        A(f"s_mul_i32 s{sT0}, s{sT0}, 20480")
        A(f"v_add_u32 v{vO[i]}, s{sT0}, v{vB[0]}")
    A(f"s_mul_i32 s{sA}, s{sMt}, {4*20*1024}")
    A(f"s_lshl_b32 s{sT0}, s{sW}, 10")
    A(f"s_add_u32 s{sA}, s{sA}, s{sT0}")
    A(f"s_mul_i32 s{sB}, s{sW}, 40960")
    A(f"s_mul_i32 s{sT0}, s{sNt}, 5120")
    A(f"s_add_u32 s{sB}, s{sB}, s{sT0}")
    A(f"s_add_u32 s{sB}, s{sB}, {54*40960}")
    A(f"s_lshl_b32 s{sXo}, s{sMt}, 2")
    A(f"s_add_u32 s{sXo}, s{sXo}, s{sW}")
    A(f"s_mul_i32 s{sYo}, s{sXo}, {40*512}")
    A(f"s_mul_i32 s{sT0}, s{sNt}, 2560")
    A(f"s_add_u32 s{sYo}, s{sYo}, s{sT0}")
    A(f"v_lshlrev_b32 v{vY}, 3, v0")
    A("s_waitcnt lgkmcnt(0)")
    srd(A, 12, 8, 9, WS_OF, SZ_OF)
    srd(A, 16, 8, 9, WS_WF, SZ_WF)
    for u in range(5):
        if u:
            A(f"s_add_u32 s{sA}, s{sA}, 4096")
            A(f"s_add_u32 s{sB}, s{sB}, {4*40960}")
        for i in range(4):
            A(f"buffer_load_dwordx4 {v(FA[u][i],4)}, v{vO[i]}, s[12:15], s{sA} offen")
        for j in range(5):
            A(f"buffer_load_dwordx4 {v(FB[u][j],4)}, v{vB[j>>2]}, s[16:19], s{sB} offen offset:{(j&3)*1024}")
    srd(A, 20, 8, 9, WS_YB, SZ_YB)
    for j in range(5):
        A(f"buffer_load_dwordx2 {v(XR[j],2)}, v{vY}, s[20:23], s{sYo} offen offset:{j*512}")
    srd(A, 24, 6, 7, 0, 2048 * 1280)
    A(f"v_and_b32 v{vT[0]}, 15, v0")
    A(f"v_mul_u32_u24 v{vT[0]}, 1280, v{vT[0]}")
    A(f"v_lshrrev_b32 v{vT[1]}, 4, v0")
    A(f"v_lshl_add_u32 v{vX}, v{vT[1]}, 3, v{vT[0]}")
    A(f"s_mul_i32 s{sXo}, s{sXo}, {16*1280}")
    A(f"s_mul_i32 s{sT0}, s{sNt}, 160")
    A(f"s_add_u32 s{sXo}, s{sXo}, s{sT0}")
    ST(1)
    for u in range(5):
        for j in range(5):
            A(f"s_waitcnt vmcnt({(4-u)*9 + 5 + (4-j)})")
            for i in (1, 2, 3, 0):
                c = a(ACC[i][j], 4)
                A(f"v_mfma_f32_16x16x32_bf16 {c}, {v(FB[u][j],4)}, {v(FA[u][i],4)}, {c if u else 0}")
        if u == 0: ST(2)
    ST(3)
    for i in range(1, 4):
        A(f"s_add_u32 s{sT0}, s{sW}, {i}")
        A(f"s_and_b32 s{sT0}, s{sT0}, 3")
        A(f"s_mul_i32 s{sT0}, s{sT0}, 15360")
        A(f"s_add_u32 s{sT0}, s{sT0}, {(i-1)*5120}")
        A(f"v_add_u32 v{vO[i]}, s{sT0}, v{vB[0]}")
    for j in range(5):
        for i in range(1, 4):
            A(f"ds_write_b128 v{vO[i]}, {a(ACC[i][j],4)} offset:{j*1024}")
    T = FA[0][0]; U = T + 20; W = U + 60
    A(f"s_mul_i32 s{sT0}, s{sW}, 15360")
    A(f"v_add_u32 v{vT[0]}, s{sT0}, v{vB[0]}")
    for q in range(20):
        A(f"v_accvgpr_read_b32 v{T+q}, a{ACC[0][0]+q}")
    A("s_waitcnt vmcnt(0)")
    for j in range(5):
        for e in range(2):
            A(f"v_lshlrev_b32 v{W+4*j+2*e}, 16, v{XR[j]+e}")
            A(f"v_and_b32 v{W+4*j+2*e+1}, 0xffff0000, v{XR[j]+e}")
    for q in range(20):
        A(f"v_add_f32 v{T+q}, v{T+q}, v{W+q}")
    A("s_waitcnt lgkmcnt(0)")
    A("s_barrier")
    for j in range(5):
        for d in range(3):
            A(f"ds_read_b128 {v(U+20*d+4*j,4)}, v{vT[0]} offset:{d*5120+j*1024}")
    for j in range(5):
        A(f"s_waitcnt lgkmcnt({12-3*j})")
        for q in range(4):
            A(f"v_add_f32 v{U+4*j+q}, v{U+4*j+q}, v{U+20+4*j+q}")
            A(f"v_add_f32 v{T+4*j+q}, v{T+4*j+q}, v{U+40+4*j+q}")
        for q in range(4):
            A(f"v_add_f32 v{T+4*j+q}, v{T+4*j+q}, v{U+4*j+q}")
        A(f"v_cvt_pk_bf16_f32 v{XR[j]}, v{T+4*j}, v{T+4*j+1}")
        A(f"v_cvt_pk_bf16_f32 v{XR[j]+1}, v{T+4*j+2}, v{T+4*j+3}")
        A(f"buffer_store_dwordx2 {v(XR[j],2)}, v{vX}, s[24:27], s{sXo} offen offset:{j*32}")
    ST(4)
    ST.dump(8, sW, 4, slot=2)
    A.label("k3_exit")
    A("s_endpgm")
    return kernel_wrap(name, A.text(), 256 + 80, accum=256), 61440, nv

if __name__ == "__main__":
    t, lds, nv = gen_k3()
    print(lds, nv, len(t.split("\n")))
```

```python
from mk import *
from k1 import gen_k1
from k2c import gen_k2
from k3b import gen_k3
t1, l1, _ = gen_k1()
t2, l2, _ = gen_k2(sw=2, swb=3)
t3, l3, _ = gen_k3()
ins = """    s_cmp_ge_u32 s2, 16
    s_cbranch_scc1 dbg_skip
    s_load_dwordx2 s[60:61], s[0:1], 56
    s_memrealtime s[62:63]
    s_getreg_b32 s70, hwreg(HW_REG_XCC_ID)
    s_waitcnt lgkmcnt(0)
    s_mov_b32 s64, s60
    s_mov_b32 s65, s61
    s_mov_b32 s66, 256
    s_mov_b32 s67, 0x00020000
    s_and_b32 s62, s62, 0xffffff
    s_cmp_ge_u32 s2, 8
    s_cselect_b32 s62, s70, s62
    s_lshl_b32 s68, s2, 2
    v_mov_b32 v200, s62
    v_mov_b32 v201, 0
    buffer_store_dword v200, v201, s[64:67], s68 offen
dbg_skip:
"""
t1 = t1.replace("proj_kernel:\n", "proj_kernel:\n" + ins, 1)
emit("dbg.s", [("proj_kernel", t1, 256, 512, l1), ("attn_kernel", t2, 256, 768, l2), ("outp_kernel", t3, 256, 256, l3)])
```

```python
from mk import *
from k1 import gen_k1
from k2c import gen_k2
from k3b import gen_k3
t1, l1, _ = gen_k1()
t2, l2, _ = gen_k2(sw=2, swb=3)
t3, l3, _ = gen_k3()
ins = """    s_cmp_ge_u32 s2, 16
    s_cbranch_scc1 dbg_skip
    s_load_dwordx2 s[60:61], s[0:1], 64
    s_memrealtime s[62:63]
    s_getreg_b32 s70, hwreg(HW_REG_XCC_ID)
    s_waitcnt lgkmcnt(0)
    s_add_u32 s64, s60, 0x2000000
    s_addc_u32 s65, s61, 0
    s_mov_b32 s66, 256
    s_mov_b32 s67, 0x00020000
    s_and_b32 s62, s62, 0xffffff
    s_cmp_ge_u32 s2, 8
    s_cselect_b32 s62, s70, s62
    s_lshl_b32 s68, s2, 2
    v_mov_b32 v200, s62
    v_mov_b32 v201, 0
    buffer_store_dword v200, v201, s[64:67], s68 offen sc1
dbg_skip:
"""
t1 = t1.replace("proj_kernel:\n", "proj_kernel:\n" + ins, 1)
ins3 = """    s_cmp_ge_u32 s2, 1
    s_cbranch_scc1 dbg_skip3
    s_load_dwordx4 s[60:63], s[0:1], 56
    s_waitcnt lgkmcnt(0)
    s_add_u32 s64, s62, 0x2000000
    s_addc_u32 s65, s63, 0
    s_mov_b32 s66, 64
    s_mov_b32 s67, 0x00020000
    v_lshlrev_b32 v201, 2, v0
    buffer_load_dword v200, v201, s[64:67], 0 offen sc1
    s_mov_b32 s68, s60
    s_mov_b32 s69, s61
    s_mov_b32 s70, 64
    s_mov_b32 s71, 0x00020000
    s_waitcnt vmcnt(0)
    buffer_store_dword v200, v201, s[68:71], 0 offen
dbg_skip3:
"""
t3 = t3.replace("outp_kernel:\n", "outp_kernel:\n" + ins3, 1)
emit("dbg.s", [("proj_kernel", t1, 256, 512, l1), ("attn_kernel", t2, 256, 768, l2), ("outp_kernel", t3, 256, 256, l3)])
```
